```python
import torch

def _softmax(x, axis=-1):
    return torch.softmax(x, dim=axis)
def _gelu(x):
    return torch.nn.functional.gelu(x, approximate="tanh")
def _silu(x):
    return torch.nn.functional.silu(x)
def _sigmoid(x):
    return torch.sigmoid(x)
def _layernorm(x, axis=-1, eps=1e-5):
    m = x.mean(dim=axis, keepdim=True)
    v = x.var(dim=axis, keepdim=True, unbiased=False)
    return (x - m) / torch.sqrt(v + eps)
def _scatter_add(tgt, idx, src, axis=0):
    return tgt.clone().index_add_(axis, idx, src)
def _segment_sum(src, seg, n):
    out = torch.zeros((n,) + src.shape[1:], dtype=src.dtype)
    return out.index_add_(0, seg, src)
def _pad(x, pw):
    flat = tuple(v for pair in reversed(pw) for v in pair)
    return torch.nn.functional.pad(x, flat)

kernel_name = 'standalone__low_rank_proj_linformer__decode'

def setup_inputs():

    _w = (lambda a: (lambda t: t.to(torch.bfloat16) if t.is_floating_point() else t)(torch.as_tensor(a)))
    B, H, Sq, Skv, Dh, R = 4, 32, 1, 8192, 128, 64
    return {
        "q": _w((lambda *s: torch.randn(*s, dtype=torch.bfloat16) * 0.8)(B, H, Sq, Dh)),
        "k": _w((lambda *s: torch.randn(*s, dtype=torch.bfloat16) * 0.8)(B, H, Skv, Dh)),
        "v": _w((lambda *s: torch.randn(*s, dtype=torch.bfloat16) * 0.05)(B, H, Skv, Dh)),
        "e_proj": _w((lambda *s: torch.randn(*s, dtype=torch.bfloat16) * 0.8)(R, Skv) * (Skv ** -0.5)),
        "f_proj": _w((lambda *s: torch.randn(*s, dtype=torch.bfloat16) * 0.05)(R, Skv) * (Skv ** -0.5)),
    }

def reference(q, k, v, e_proj, f_proj):
    B, H, Sq, Dh = q.shape
    kp = torch.einsum("rn,bhnd->bhrd", e_proj, k)
    vp = torch.einsum("rn,bhnd->bhrd", f_proj, v)
    scores = torch.einsum("bhqd,bhrd->bhqr", q, kp) * (Dh ** -0.5)
    p = _softmax(scores, axis=-1)
    o = torch.einsum("bhqr,bhrd->bhqd", p, vp)
    return o
```

```python
import sys
from common import *
POL=sys.argv[2] if len(sys.argv)>2 else "nt"
EPOL=sys.argv[3] if len(sys.argv)>3 else "nt"
if POL=="def": POL=""
if EPOL=="def": EPOL=""
TOT=256<<20
PS_OFF=0
PO_OFF=1<<20
vLane=0; vKoff=1; vE0=2; vE1=3; vLr=4
vT=8
vTmp=16
vQ=24
vBh=32; vBl=36
vAcc=40
vFr=56
vBuf=88
NV=152
def prologue(a,name,nwg):
    a(f"s_cmp_ge_u32 s2, {nwg}\ns_cbranch_scc1 L_end_{name}")
    a("s_load_dwordx4 s[4:7], s[0:1], 0\ns_load_dwordx4 s[8:11], s[0:1], 16\ns_load_dwordx4 s[12:15], s[0:1], 32\ns_load_dwordx4 s[16:19], s[0:1], 48")
    a("v_lshrrev_b32 v1, 6, v0\nv_and_b32 v0, 63, v0\nv_readfirstlane_b32 s3, v1")
    a("s_and_b32 s32, s2, 7\ns_lshr_b32 s33, s2, 3")
    a("s_lshl_b32 s34, s33, 2\ns_add_u32 s34, s34, s3")
    a(f"v_and_b32 v{vTmp}, 15, v0\nv_lshrrev_b32 v{vTmp+1}, 4, v0\nv_lshlrev_b32 v{vKoff}, 4, v{vTmp}\nv_lshl_add_u32 v{vKoff}, v{vTmp+1}, 12, v{vKoff}")
    a(f"v_bfe_u32 v{vTmp+2}, v0, 4, 1\nv_bfe_u32 v{vTmp+3}, v0, 5, 1\nv_and_b32 v{vTmp+4}, 7, v0\nv_lshrrev_b32 v{vTmp+5}, 3, v0")
    a(f"s_lshl_b32 s35, s3, 4\nv_add_u32 v{vTmp+5}, s35, v{vTmp+5}\nv_lshlrev_b32 v{vTmp+5}, 14, v{vTmp+5}")
    a(f"v_lshl_or_b32 v{vTmp+6}, v{vTmp+3}, 2, v{vTmp+2}\nv_xor_b32 v{vTmp+6}, v{vTmp+6}, v{vTmp+4}")
    a(f"v_lshl_add_u32 v{vE0}, v{vTmp+6}, 4, v{vTmp+5}")
    a(f"v_xor_b32 v{vTmp+6}, 6, v{vTmp+6}\nv_lshl_add_u32 v{vE1}, v{vTmp+6}, 4, v{vTmp+5}\nv_add_u32 v{vE1}, {8*16384}, v{vE1}")
    a("s_lshl_b32 s36, s3, 11")
def srds(a,sp,ep):
    a(f"s_lshl_b32 s37, s34, 21\ns_add_u32 s20, s{sp}, s37\ns_addc_u32 s21, s{sp+1}, 0\ns_mov_b32 s22, {2<<20}\ns_mov_b32 s23, 0x20000")
    a(f"s_mov_b32 s24, s{ep}\ns_mov_b32 s25, s{ep+1}\ns_mov_b32 s26, {1<<20}\ns_mov_b32 s27, 0x20000")
def issue_dma(a):
    a("s_lshl_b32 s41, s40, 7\ns_mov_b32 m0, s36\ns_lshl_b32 s42, s40, 14")
    a(f"buffer_load_dwordx4 v{vE0}, s[24:27], s41 offen {EPOL} lds")
    a("s_add_u32 m0, s36, 1024\ns_nop 0")
    a(f"buffer_load_dwordx4 v{vE1}, s[24:27], s41 offen {EPOL} lds")
def issue_load(a,j):
    r=vBuf+4*j
    a(f"buffer_load_dwordx4 v[{r}:{r+3}], v{vKoff}, s[20:23], s42 offen offset:{j*256} {POL}")

def kbody(a,issue):
    if issue: issue_dma(a)
    for b in range(2):
        for rt in range(4):
            r=vFr+16*b+4*rt
            a(f"ds_read_b128 v[{r}:{r+3}], v{vLr+b} offset:{rt*2048}")
    for b in range(2):
        for jj in range(8):
            j=8*b+jj; r=vBuf+4*j
            a(f"s_waitcnt vmcnt({17 if issue else 15-j})")
            a(f"v_dot2_f32_bf16 v{vT+jj}, v{r}, v{vQ}, 0")
            for x in range(1,4): a(f"v_dot2_f32_bf16 v{vT+jj}, v{r+x}, v{vQ+x}, v{vT+jj}")
            if issue: issue_load(a,j)
        a("s_nop 2")
        for p in range(4):
            t0=vT+2*p; t1=t0+1
            a(f"v_cvt_pk_bf16_f32 v{vBh+p}, v{t0}, v{t1}")
            a(f"v_lshlrev_b32 v{vTmp}, 16, v{vBh+p}\nv_and_b32 v{vTmp+1}, 0xffff0000, v{vBh+p}")
            a(f"v_sub_f32 v{vTmp}, v{t0}, v{vTmp}\nv_sub_f32 v{vTmp+1}, v{t1}, v{vTmp+1}")
            a(f"v_cvt_pk_bf16_f32 v{vBl+p}, v{vTmp}, v{vTmp+1}")
        a("s_waitcnt lgkmcnt(0)\ns_nop 0" if b==0 else "s_nop 1")
        for B in (vBh,vBl):
            for rt in range(4):
                r=vFr+16*b+4*rt; c=vAcc+4*rt
                a(f"v_mfma_f32_16x16x32_bf16 v[{c}:{c+3}], v[{r}:{r+3}], v[{B}:{B+3}], v[{c}:{c+3}]")

def kkernel():
    name="kphase_kernel"; a=Asm()
    prologue(a,name,256)
    a(f"v_bfe_u32 v{vTmp+2}, v0, 1, 1\nv_bfe_u32 v{vTmp+3}, v0, 2, 1\nv_bfe_u32 v{vTmp+4}, v0, 3, 1")
    a(f"v_xor_b32 v{vTmp+3}, v{vTmp+3}, v{vTmp+4}\nv_lshl_or_b32 v{vTmp+2}, v{vTmp+4}, 1, v{vTmp+2}\nv_lshl_or_b32 v{vTmp+2}, v{vTmp+3}, 2, v{vTmp+2}")
    a(f"v_lshlrev_b32 v{vTmp+3}, 1, v{vTmp+1}\nv_xor_b32 v{vTmp+2}, v{vTmp+2}, v{vTmp+3}\nv_lshlrev_b32 v{vTmp+2}, 4, v{vTmp+2}")
    a(f"v_lshl_add_u32 v{vLr}, v{vTmp}, 7, v{vTmp+2}\nv_xor_b32 v{vLr+1}, 16, v{vLr}")
    a("s_waitcnt lgkmcnt(0)")
    srds(a,6,10)
    a(f"s_lshl_b32 s37, s34, 8\ns_add_u32 s4, s4, s37\ns_addc_u32 s5, s5, 0\nv_lshlrev_b32 v{vTmp+2}, 4, v{vTmp}")
    a(f"global_load_dwordx4 v[{vQ}:{vQ+3}], v{vTmp+2}, s[4:5]")
    a("s_mov_b32 s40, s32")
    issue_dma(a)
    for j in range(16): issue_load(a,j)
    for x in range(16): a(f"v_mov_b32 v{vAcc+x}, 0")
    a("s_mov_b32 s43, 15")
    a(f"L_loop_{name}:")
    a("s_waitcnt vmcnt(16)\ns_barrier")
    a("s_add_u32 s40, s40, 8\ns_xor_b32 s36, s36, 8192")
    kbody(a,True)
    a(f"v_xor_b32 v{vLr}, 0x2000, v{vLr}\nv_xor_b32 v{vLr+1}, 0x2000, v{vLr+1}")
    a(f"s_sub_u32 s43, s43, 1\ns_cmp_lg_u32 s43, 0\ns_cbranch_scc1 L_loop_{name}")
    a("s_waitcnt vmcnt(16)\ns_barrier")
    kbody(a,False)
    a("s_nop 7\ns_nop 1")
    for sh in (8,4,2,1):
        for x in range(16): a(f"v_add_f32_dpp v{vAcc+x}, v{vAcc+x}, v{vAcc+x} row_ror:{sh} row_mask:0xf bank_mask:0xf")
    a(f"s_lshl_b32 s37, s34, 3\ns_add_u32 s37, s37, s32\ns_lshl_b32 s37, s37, 8\ns_add_u32 s18, s18, s37\ns_addc_u32 s19, s19, 0")
    a(f"v_and_b32 v{vTmp}, 15, v0\nv_cmp_eq_u32 vcc, 0, v{vTmp}\nv_and_b32 v{vTmp+1}, 48, v0\ns_and_saveexec_b64 s[44:45], vcc")
    for rt in range(4):
        a(f"global_store_dwordx4 v{vTmp+1}, v[{vAcc+4*rt}:{vAcc+4*rt+3}], s[18:19] offset:{PS_OFF+rt*64}")
    a(f"L_end_{name}:\ns_endpgm")
    return (name,a.text(),NV,64,None)

def vbody(a,issue):
    if issue: issue_dma(a)
    for nt in range(4):
        for kt in range(2):
            for h in range(2):
                r=vFr+8*nt+4*kt+2*h
                a(f"ds_read_b64_tr_b16 v[{r}:{r+1}], v{vLr+2*h+(nt>>1)} offset:{kt*4096+(nt&1)*8}")
    for nt in range(4):
        a(f"s_waitcnt lgkmcnt({12-4*nt})")
        c=vAcc+4*nt; r=vFr+8*nt
        a(f"v_mfma_f32_16x16x32_bf16 v[{c}:{c+3}], v[{r}:{r+3}], v[{vQ}:{vQ+3}], 0")
        a(f"v_mfma_f32_16x16x32_bf16 v[{c}:{c+3}], v[{r+4}:{r+7}], v[{vQ+4}:{vQ+7}], v[{c}:{c+3}]")
    a("s_nop 7")
    for j in range(16):
        r=vBuf+4*j; w=vAcc+j
        a(f"s_waitcnt vmcnt({17 if issue else 15-j})")
        for x in range(4):
            a(f"v_lshlrev_b32 v{vTmp+2*x}, 16, v{r+x}\nv_and_b32 v{vTmp+2*x+1}, 0xffff0000, v{r+x}")
        if issue: issue_load(a,j)
        for x in range(8):
            a(f"v_fmac_f32 v{vT+x}, v{w}, v{vTmp+x}")

def softmax(a,x,t):
    a(f"v_cvt_pk_bf16_f32 v{t}, v{x}, v{x}\nv_and_b32 v{t}, 0xffff0000, v{t}\nv_mul_f32 v{t}, 0x3db504f3, v{t}")
    a(f"v_cvt_pk_bf16_f32 v{t}, v{t}, v{t}\nv_and_b32 v{x}, 0xffff0000, v{t}")
    def allred(op,src,dst,tmp):
        a(f"s_nop 1\n{op}_dpp v{dst}, v{src}, v{src} row_ror:8 row_mask:0xf bank_mask:0xf")
        for sh in (4,2,1): a(f"s_nop 1\n{op}_dpp v{dst}, v{dst}, v{dst} row_ror:{sh} row_mask:0xf bank_mask:0xf")
        a(f"v_mov_b32 v{tmp}, v{dst}\ns_nop 1\nv_permlane16_swap_b32 v{dst}, v{tmp}\ns_nop 1\n{op} v{dst}, v{dst}, v{tmp}")
        a(f"v_mov_b32 v{tmp}, v{dst}\ns_nop 1\nv_permlane32_swap_b32 v{dst}, v{tmp}\ns_nop 1\n{op} v{dst}, v{dst}, v{tmp}")
    allred("v_max_f32",x,t,t+1)
    a(f"v_sub_f32 v{x}, v{x}, v{t}\nv_mul_f32 v{x}, 0x3fb8aa3b, v{x}\nv_exp_f32 v{x}, v{x}\ns_nop 0")
    allred("v_add_f32",x,t,t+1)
    a(f"v_rcp_f32 v{t}, v{t}\ns_nop 0\nv_mul_f32 v{x}, v{x}, v{t}\nv_cvt_pk_bf16_f32 v{t}, v{x}, v{x}")

def vkernel():
    name="vphase_kernel"; a=Asm()
    prologue(a,name,256)
    a(f"v_bfe_u32 v{vTmp+2}, v0, 3, 1\nv_bfe_u32 v{vTmp+3}, v0, 4, 1\nv_mul_u32_u24 v{vTmp+3}, 6, v{vTmp+3}\nv_or_b32 v{vTmp+2}, v{vTmp+2}, v{vTmp+3}")
    a(f"v_and_b32 v{vTmp+3}, 3, v0\nv_lshlrev_b32 v{vTmp+3}, 1, v{vTmp+3}\nv_xor_b32 v{vTmp+2}, v{vTmp+2}, v{vTmp+3}\nv_lshlrev_b32 v{vTmp+2}, 4, v{vTmp+2}")
    a(f"v_bfe_u32 v{vTmp+3}, v0, 2, 2\nv_lshl_add_u32 v{vTmp+3}, v{vTmp+1}, 3, v{vTmp+3}\nv_lshl_add_u32 v{vLr}, v{vTmp+3}, 7, v{vTmp+2}")
    a(f"v_xor_b32 v{vLr+1}, 16, v{vLr}\nv_xor_b32 v{vLr+2}, 64, v{vLr}\nv_add_u32 v{vLr+2}, 512, v{vLr+2}\nv_xor_b32 v{vLr+3}, 16, v{vLr+2}")
    a("s_waitcnt lgkmcnt(0)")
    srds(a,8,12)
    a(f"s_lshl_b32 s37, s34, 11\ns_add_u32 s44, s18, s37\ns_addc_u32 s45, s19, 0\nv_lshlrev_b32 v{vBh}, 2, v0")
    for m in range(8): a(f"global_load_dword v{vFr+m}, v{vBh}, s[44:45] offset:{PS_OFF+m*256}")
    a("s_mov_b32 s40, s32")
    issue_dma(a)
    for j in range(16): issue_load(a,j)
    a("s_waitcnt vmcnt(18)")
    for m in range(1,8): a(f"v_add_f32 v{vFr}, v{vFr}, v{vFr+m}")
    softmax(a,vFr,vFr+1)
    a(f"s_lshl_b32 s37, s3, 7\ns_add_u32 s37, s37, 16384\nv_lshl_add_u32 v{vBh}, v0, 1, s37\nds_write_b16 v{vBh}, v{vFr+1}")
    a(f"v_lshrrev_b32 v{vBh}, 4, v0\nv_lshl_add_u32 v{vBh}, v{vBh}, 4, s37\ns_waitcnt lgkmcnt(0)")
    a(f"ds_read_b128 v[{vQ}:{vQ+3}], v{vBh}\nds_read_b128 v[{vQ+4}:{vQ+7}], v{vBh} offset:64")
    for x in range(8): a(f"v_mov_b32 v{vT+x}, 0")
    a("s_mov_b32 s43, 15\ns_waitcnt lgkmcnt(0)")
    a(f"L_loop_{name}:")
    a("s_waitcnt vmcnt(16)\ns_barrier")
    a("s_add_u32 s40, s40, 8\ns_xor_b32 s36, s36, 8192")
    vbody(a,True)
    for x in range(4): a(f"v_xor_b32 v{vLr+x}, 0x2000, v{vLr+x}")
    a(f"s_sub_u32 s43, s43, 1\ns_cmp_lg_u32 s43, 0\ns_cbranch_scc1 L_loop_{name}")
    a("s_waitcnt vmcnt(16)\ns_barrier")
    vbody(a,False)
    for swap in ("v_permlane16_swap_b32","v_permlane32_swap_b32"):
        for x in range(8): a(f"v_mov_b32 v{vTmp+x}, v{vT+x}")
        a("s_nop 1")
        for x in range(8): a(f"{swap} v{vT+x}, v{vTmp+x}")
        a("s_nop 1")
        for x in range(8): a(f"v_add_f32 v{vT+x}, v{vT+x}, v{vTmp+x}")
    a(f"s_lshl_b32 s37, s34, 3\ns_add_u32 s37, s37, s32\ns_lshl_b32 s37, s37, 9\ns_add_u32 s37, s37, {PO_OFF}\ns_add_u32 s18, s18, s37\ns_addc_u32 s19, s19, 0")
    a(f"v_cmp_gt_u32 vcc, 16, v0\nv_lshlrev_b32 v{vBh}, 5, v0\ns_and_saveexec_b64 s[44:45], vcc")
    a(f"global_store_dwordx4 v{vBh}, v[{vT}:{vT+3}], s[18:19]\nglobal_store_dwordx4 v{vBh}, v[{vT+4}:{vT+7}], s[18:19] offset:16")
    a(f"L_end_{name}:\ns_endpgm")
    return (name,a.text(),NV,64,None)

def fkernel():
    name="final_kernel"; a=Asm()
    a(f"s_cmp_ge_u32 s2, 64\ns_cbranch_scc1 L_end_{name}")
    a("s_load_dwordx2 s[4:5], s[0:1], 40\ns_load_dwordx2 s[6:7], s[0:1], 56")
    a("s_lshl_b32 s3, s2, 8\nv_add_u32 v1, s3, v0\nv_lshrrev_b32 v2, 7, v1\nv_and_b32 v3, 127, v1\nv_lshlrev_b32 v3, 2, v3\nv_lshl_add_u32 v2, v2, 12, v3\nv_lshlrev_b32 v1, 1, v1")
    a(f"s_waitcnt lgkmcnt(0)\ns_add_u32 s6, s6, {PO_OFF}\ns_addc_u32 s7, s7, 0")
    for m in range(8): a(f"global_load_dword v{4+m}, v2, s[6:7] offset:{m*512}")
    for m in range(1,8): a(f"s_waitcnt vmcnt({7-m})\nv_add_f32 v4, v4, v{4+m}")
    a("v_cvt_pk_bf16_f32 v4, v4, v4\nglobal_store_short v1, v4, s[4:5]")
    a(f"L_end_{name}:\ns_endpgm")
    return (name,a.text(),16,32,None)

print(emit(sys.argv[1],[kkernel(),vkernel(),fkernel()],[("kphase_kernel",256,256,16384),("vphase_kernel",256,256,16384+512),("final_kernel",64,256,0)]))
```

```python
import sys, argparse
from common import *
ap=argparse.ArgumentParser()
ap.add_argument("out"); ap.add_argument("--pol",default="nt"); ap.add_argument("--epol",default="")
ap.add_argument("--order",default="cyc"); ap.add_argument("--rot",default="none"); ap.add_argument("--diag",type=int,default=0)
ap.add_argument("--trigA",type=int,default=12); ap.add_argument("--trigB",type=int,default=20)
ap.add_argument("--trigFA",type=int,default=30); ap.add_argument("--fsleep",type=int,default=1)
A=ap.parse_args()
POL=A.pol; EPOL=A.epol
NAME=KNAME+"_kernel"
PS_OFF=0x100000
PO_OFF=0x200000
TS_OFF=0
L_E=0; L_F=65536; L_W=131072; L_P=L_W+16384; L_FLAG=L_P+512; LDS_BYTES=L_FLAG+64
F_ER=L_FLAG; F_WR=L_FLAG+4; F_PROG=L_FLAG+8; F_DONE=L_FLAG+12
SENT=-1
vKoff=1; vLr=2; vLa=4; vFl=6; vSt=7
vT=8; vTmp=16; vQ=24; vQB=28; vBh=32; vBl=36; vAcc=40; vFr=56; vBuf=88; NV=152
sWave=3; sMem=32; sGrp=33; sHead=34; sK=40; sK1=41; sOff=42; sSet=43; sIdx=44; sRot=45
sNB=46
sKB=48; sVA=50; sVB=52; sT=54
sM=60
sCap=72
sTS=68
a=Asm()
def chunk_off(dst,k):
    a(f"s_add_u32 s{dst}, s{k}, s{sRot}\ns_and_b32 s{dst}, s{dst}, 7")
    if A.order=="cyc": a(f"s_lshl_b32 s{dst}, s{dst}, 4\ns_add_u32 s{dst}, s{dst}, s{sMem}")
    else: a(f"s_lshl_b32 s{sT+5}, s{sMem}, 3\ns_add_u32 s{dst}, s{dst}, s{sT+5}")
def issue_load(j):
    r=vBuf+4*j
    a(f"buffer_load_dwordx4 v[{r}:{r+3}], v{vKoff}, s[20:23], s{sOff} offen offset:{j*256} {POL}")
uid=[0]
CAP=f"s_sub_u32 s{sCap}, s{sCap}, 1\ns_cbranch_scc1 L_end"
def lds_wait_ge(flag,sval,imm=None,tmpv=vTmp,sleep=1):
    uid[0]+=1; L=f"L_w{uid[0]}"
    a(f"{L}:\nds_read_b32 v{tmpv}, v{vFl} offset:{flag-L_FLAG}\ns_waitcnt lgkmcnt(0)\nv_readfirstlane_b32 s{sT}, v{tmpv}")
    a(f"s_cmp_ge_u32 s{sT}, {imm if imm is not None else 's%d'%sval}\ns_cbranch_scc1 {L}_ok\ns_sleep {sleep}\n{CAP}\ns_branch {L}\n{L}_ok:")

a(f"s_cmp_ge_u32 s2, 256\ns_cbranch_scc1 L_end")
a("s_load_dwordx4 s[4:7], s[0:1], 0\ns_load_dwordx4 s[8:11], s[0:1], 16\ns_load_dwordx4 s[12:15], s[0:1], 32\ns_load_dwordx4 s[16:19], s[0:1], 48")
if A.diag: a(f"s_memrealtime s[{sTS}:{sTS+1}]")
a(f"v_lshrrev_b32 v1, 6, v0\nv_and_b32 v0, 63, v0\nv_readfirstlane_b32 s{sWave}, v1")
a(f"s_and_b32 s{sMem}, s2, 15\ns_lshr_b32 s{sGrp}, s2, 4")
if A.rot=="none": a(f"s_mov_b32 s{sRot}, 0")
elif A.rot=="grp": a(f"s_mov_b32 s{sRot}, s{sGrp}")
elif A.rot=="mem": a(f"s_mov_b32 s{sRot}, s{sMem}")
elif A.rot=="gm": a(f"s_add_u32 s{sRot}, s{sMem}, s{sGrp}")
a(f"v_mov_b32 v{vFl}, {L_FLAG}\ns_mov_b32 s{sCap}, 0x10000")
a(f"v_and_b32 v{vTmp}, 15, v0\nv_lshrrev_b32 v{vTmp+1}, 4, v0")
a(f"s_cmp_eq_u32 s{sWave}, 4\ns_cbranch_scc1 L_helper")
a(f"s_lshl_b32 s{sHead}, s{sGrp}, 3\ns_add_u32 s{sHead}, s{sHead}, s{sWave}")
a(f"v_lshlrev_b32 v{vKoff}, 4, v{vTmp}\nv_lshlrev_b32 v{vTmp+2}, 4, v{vTmp}\nv_lshl_add_u32 v{vKoff}, v{vTmp+1}, 12, v{vKoff}")
a(f"s_mov_b32 s{sK}, 0")
chunk_off(sOff,sK); a(f"s_lshl_b32 s{sOff}, s{sOff}, 14")
a(f"s_lshl_b32 s{sT}, s{sHead}, 21\ns_lshl_b32 s{sT+1}, s{sHead}, 8\ns_mov_b32 s22, {2<<20}\ns_mov_b32 s23, 0x20000")
a("s_waitcnt lgkmcnt(0)")
a(f"s_add_u32 s20, s6, s{sT}\ns_addc_u32 s21, s7, 0\ns_add_u32 s4, s4, s{sT+1}\ns_addc_u32 s5, s5, 0")
a(f"global_load_dwordx4 v[{vQ}:{vQ+3}], v{vTmp+2}, s[4:5]\nglobal_load_dwordx4 v[{vQB}:{vQB+3}], v{vTmp+2}, s[4:5] offset:1024")
for j in range(16): issue_load(j)
a(f"s_add_u32 s{sNB}, s20, {8<<20}\ns_addc_u32 s{sNB+1}, s21, 0")
a(f"s_add_u32 s{sVA}, s8, s{sT}\ns_addc_u32 s{sVA+1}, s9, 0\ns_add_u32 s{sVB}, s{sVA}, {8<<20}\ns_addc_u32 s{sVB+1}, s{sVA+1}, 0")
a(f"v_bfe_u32 v{vTmp+2}, v0, 1, 1\nv_bfe_u32 v{vTmp+3}, v0, 2, 1\nv_bfe_u32 v{vTmp+4}, v0, 3, 1")
a(f"v_xor_b32 v{vTmp+3}, v{vTmp+3}, v{vTmp+4}\nv_lshl_or_b32 v{vTmp+2}, v{vTmp+4}, 1, v{vTmp+2}\nv_lshl_or_b32 v{vTmp+2}, v{vTmp+3}, 2, v{vTmp+2}")
a(f"v_lshlrev_b32 v{vTmp+3}, 1, v{vTmp+1}\nv_xor_b32 v{vTmp+2}, v{vTmp+2}, v{vTmp+3}\nv_lshlrev_b32 v{vTmp+2}, 4, v{vTmp+2}")
a(f"v_lshl_add_u32 v{vLr}, v{vTmp}, 7, v{vTmp+2}\nv_xor_b32 v{vLr+1}, 16, v{vLr}")
a(f"v_lshrrev_b32 v{vTmp+2}, 2, v{vTmp}\nv_and_b32 v{vTmp+3}, 3, v0\nv_lshl_add_u32 v{vTmp+3}, v{vTmp+1}, 2, v{vTmp+3}\nv_lshl_add_u32 v{vTmp+3}, v{vTmp+2}, 4, v{vTmp+3}\nv_lshlrev_b32 v{vSt}, 2, v{vTmp+3}")
for x,mk in enumerate((0xAAAAAAAA,0xCCCCCCCC,0xF0F0F0F0,0xFF00FF00)):
    a(f"s_mov_b32 s{sM+2*x}, {mk:#x}\ns_mov_b32 s{sM+2*x+1}, {mk:#x}")
a(f"s_lshl_b32 s{sT}, s{sGrp}, 15\ns_lshl_b32 s{sT+1}, s{sMem}, 10\ns_add_u32 s{sT}, s{sT}, s{sT+1}\ns_lshl_b32 s{sT+1}, s{sWave}, 8\ns_add_u32 s{sT}, s{sT}, s{sT+1}\ns_add_u32 s{sT}, s{sT}, {PS_OFF}")
a(f"s_add_u32 s24, s18, s{sT}\ns_addc_u32 s25, s19, 0")
a(f"s_lshl_b32 s{sT}, s{sGrp}, 16\ns_lshl_b32 s{sT+1}, s{sMem}, 9\ns_add_u32 s{sT}, s{sT}, s{sT+1}\ns_lshl_b32 s{sT+1}, s{sWave}, 13\ns_add_u32 s{sT}, s{sT}, s{sT+1}\ns_add_u32 s{sT}, s{sT}, {PO_OFF}")
a(f"s_add_u32 s26, s18, s{sT}\ns_addc_u32 s27, s19, 0")
for x in range(16): a(f"v_mov_b32 v{vAcc+x}, 0")
a(f"s_mov_b32 s{sSet}, 0\ns_mov_b32 s{sIdx}, 0")
a("s_barrier")
def next_desc(tag):
    a(f"s_add_u32 s{sK1}, s{sK}, 1\ns_and_b32 s{sK1}, s{sK1}, 7\ns_cbranch_scc1 L_nd{tag}")
    a(f"s_mov_b32 s20, s{sNB}\ns_mov_b32 s21, s{sNB+1}")
    if tag=="v": a(f"s_cmp_eq_u32 s{sSet}, 1\ns_cselect_b32 s22, 0, s22")
    a(f"L_nd{tag}:")
    chunk_off(sOff,sK1); a(f"s_lshl_b32 s{sOff}, s{sOff}, 14")
def progress():
    a(f"s_add_u32 s{sIdx}, s{sIdx}, 1\nv_mov_b32 v{vTmp}, s{sIdx}\nds_write_b32 v{vFl}, v{vTmp} offset:{F_PROG-L_FLAG}")
a("L_kloop:")
next_desc("k")
a(f"s_lshl_b32 s{sT+1}, s{sK}, 13\nv_add_u32 v{vLa}, s{sT+1}, v{vLr}\nv_add_u32 v{vLa+1}, s{sT+1}, v{vLr+1}")
for b in range(2):
    for jj in range(8):
        j=8*b+jj; r=vBuf+4*j
        a("s_waitcnt vmcnt(15)")
        a(f"v_dot2_f32_bf16 v{vT+jj}, v{r}, v{vQ}, 0")
        for x in range(1,4): a(f"v_dot2_f32_bf16 v{vT+jj}, v{r+x}, v{vQ+x}, v{vT+jj}")
        issue_load(j)
        if b==0 and jj==5:
            a(f"s_add_u32 s{sT+1}, s{sK}, 1")
            lds_wait_ge(F_ER,sT+1)
            for bb in range(2):
                for rt in range(4):
                    rr=vFr+16*bb+4*rt
                    a(f"ds_read_b128 v[{rr}:{rr+3}], v{vLa+bb} offset:{rt*2048}")
    a("s_nop 2")
    for p in range(4):
        t0=vT+2*p; t1=t0+1
        a(f"v_cvt_pk_bf16_f32 v{vBh+p}, v{t0}, v{t1}")
        a(f"v_lshlrev_b32 v{vTmp}, 16, v{vBh+p}\nv_and_b32 v{vTmp+1}, 0xffff0000, v{vBh+p}")
        a(f"v_sub_f32 v{vTmp}, v{t0}, v{vTmp}\nv_sub_f32 v{vTmp+1}, v{t1}, v{vTmp+1}")
        a(f"v_cvt_pk_bf16_f32 v{vBl+p}, v{vTmp}, v{vTmp+1}")
    a("s_waitcnt lgkmcnt(0)\ns_nop 0" if b==0 else "s_nop 1")
    for B in (vBh,vBl):
        for rt in range(4):
            r=vFr+16*b+4*rt; c=vAcc+4*rt
            a(f"v_mfma_f32_16x16x32_bf16 v[{c}:{c+3}], v[{r}:{r+3}], v[{B}:{B+3}], v[{c}:{c+3}]")
progress()
a(f"s_mov_b32 s{sK}, s{sK1}\ns_cmp_lg_u32 s{sK}, 0\ns_cbranch_scc1 L_kloop")
a("s_nop 7")
for sh in (8,4,2,1):
    for x in range(16): a(f"v_add_f32_dpp v{vAcc+x}, v{vAcc+x}, v{vAcc+x} row_ror:{sh} row_mask:0xf bank_mask:0xf")
n=16
for lvl in range(4):
    for x in range(n//2): a(f"v_cndmask_b32 v{vAcc+x}, v{vAcc+2*x}, v{vAcc+2*x+1}, s[{sM+2*lvl}:{sM+2*lvl+1}]")
    n//=2
a(f"v_mov_b32 v{vTmp+1}, 0x7fc00000\nv_cmp_eq_u32 vcc, {SENT}, v{vAcc}\ns_nop 1\nv_cndmask_b32 v{vTmp+2}, v{vAcc}, v{vTmp+1}, vcc")
a(f"global_store_dword v{vSt}, v{vTmp+2}, s[24:25] sc1")
for x in range(16): a(f"v_mov_b32 v{vAcc+x}, 0")
for x in range(4): a(f"v_mov_b32 v{vQ+x}, v{vQB+x}")
a(f"s_add_u32 s24, s24, 16384\ns_addc_u32 s25, s25, 0\ns_mov_b32 s{sNB}, s{sVA}\ns_mov_b32 s{sNB+1}, s{sVA+1}")
a(f"s_add_u32 s{sSet}, s{sSet}, 1\ns_cmp_lt_u32 s{sSet}, 2\ns_cbranch_scc1 L_kloop")
a(f"s_mov_b32 s{sSet}, 0\ns_mov_b32 s{sNB}, s{sVB}\ns_mov_b32 s{sNB+1}, s{sVB+1}")
a(f"s_lshl_b32 s{sT}, s{sWave}, 8\ns_add_u32 s{sT}, s{sT}, {L_W}\nv_lshrrev_b32 v{vTmp+1}, 4, v0\nv_lshl_add_u32 v{vLr}, v{vTmp+1}, 6, s{sT}")
a(f"v_and_b32 v{vTmp}, 15, v0\nv_lshlrev_b32 v{vTmp}, 5, v{vTmp}\nv_lshl_add_u32 v{vSt}, v{vTmp+1}, 4, v{vTmp}")
a("L_vset:")
for x in range(8): a(f"v_mov_b32 v{vT+x}, 0")
a(f"s_add_u32 s{sT+1}, s{sSet}, 1")
lds_wait_ge(F_WR,sT+1)
a("L_vloop:")
for x in range(4): a(f"ds_read_b128 v[{vAcc+4*x}:{vAcc+4*x+3}], v{vLr} offset:{16*x}")
next_desc("v")
a(f"v_add_u32 v{vLr}, 1024, v{vLr}")
for j in range(16):
    r=vBuf+4*j; w=vAcc+j
    a("s_waitcnt vmcnt(15)" + (f" lgkmcnt({3-j//4})" if j%4==0 else ""))
    for x in range(4):
        a(f"v_lshlrev_b32 v{vTmp+2*x}, 16, v{r+x}\nv_and_b32 v{vTmp+2*x+1}, 0xffff0000, v{r+x}")
    issue_load(j)
    for x in range(8): a(f"v_fmac_f32 v{vT+x}, v{w}, v{vTmp+x}")
progress()
a(f"s_mov_b32 s{sK}, s{sK1}\ns_cmp_lg_u32 s{sK}, 0\ns_cbranch_scc1 L_vloop")
for swap in ("v_permlane16_swap_b32","v_permlane32_swap_b32"):
    for x in range(8): a(f"v_mov_b32 v{vTmp+x}, v{vT+x}")
    a("s_nop 0")
    for x in range(8): a(f"{swap} v{vT+x}, v{vTmp+x}")
    for x in range(8): a(f"v_add_f32 v{vT+x}, v{vT+x}, v{vTmp+x}")
a(f"s_mov_b32 s{sT}, 0xffff0000\ns_mov_b32 s{sT+1}, 0\nv_mov_b32 v{vTmp+4}, 0x7fc00000")
for x in range(4): a(f"v_cndmask_b32 v{vTmp+x}, v{vT+x}, v{vT+4+x}, s[{sT}:{sT+1}]")
for x in range(4): a(f"v_cmp_eq_u32 vcc, {SENT}, v{vTmp+x}\ns_nop 1\nv_cndmask_b32 v{vBh+x}, v{vTmp+x}, v{vTmp+4}, vcc")
a(f"s_mov_b32 exec_hi, 0\nglobal_store_dwordx4 v{vSt}, v[{vBh}:{vBh+3}], s[26:27] sc1\ns_mov_b32 exec_hi, -1")
a(f"s_add_u32 s26, s26, 32768\ns_addc_u32 s27, s27, 0")
a(f"s_add_u32 s{sSet}, s{sSet}, 1\ns_cmp_lt_u32 s{sSet}, 2\ns_cbranch_scc1 L_vset")
if A.diag==1 or A.diag>2:
    a(f"s_memrealtime s[{sTS+2}:{sTS+3}]\ns_lshl_b32 s{sT}, s2, 2\ns_add_u32 s{sT}, s{sT}, s{sWave}\ns_lshl_b32 s{sT}, s{sT}, 5\ns_getreg_b32 s{sT+1}, hwreg(HW_REG_XCC_ID)\ns_waitcnt lgkmcnt(0)")
    a(f"v_mov_b32 v8, s{sTS}\nv_mov_b32 v9, s{sTS+1}\nv_mov_b32 v10, s{sTS+2}\nv_mov_b32 v11, s{sTS+3}\nv_mov_b32 v12, s{sT+1}\nv_mov_b32 v13, 0\nv_mov_b32 v14, 0\nv_mov_b32 v15, 0\nv_mov_b32 v7, s{sT}")
    a("s_mov_b64 exec, 1\nglobal_store_dwordx4 v7, v[8:11], s[18:19]\nglobal_store_dwordx4 v7, v[12:15], s[18:19] offset:16")
    if A.diag>2: a("v_mov_b32 v7, 0\nv_not_b32 v8, v8\nglobal_atomic_umax v7, v8, s[16:17] offset:4\nglobal_atomic_umax v7, v10, s[16:17] offset:8")
a("s_endpgm")
a("L_helper:")
vE0=1; vE1=2; vTr=8
vH=12
vP=24
vW=32
vA=48
vL=80
a(f"v_mov_b32 v{vH}, 0\nv_mov_b32 v{vH+1}, 0\nv_mov_b32 v{vH+2}, 0\nv_mov_b32 v{vH+3}, 0\nds_write_b128 v{vFl}, v[{vH}:{vH+3}]")
a(f"v_bfe_u32 v{vTmp+2}, v0, 4, 1\nv_bfe_u32 v{vTmp+3}, v0, 5, 1\nv_and_b32 v{vTmp+4}, 7, v0\nv_lshrrev_b32 v{vTmp+5}, 3, v0\nv_lshlrev_b32 v{vTmp+5}, 14, v{vTmp+5}")
a(f"v_lshl_or_b32 v{vTmp+6}, v{vTmp+3}, 2, v{vTmp+2}\nv_xor_b32 v{vTmp+6}, v{vTmp+6}, v{vTmp+4}")
a(f"v_lshl_add_u32 v{vE0}, v{vTmp+6}, 4, v{vTmp+5}")
a(f"v_xor_b32 v{vTmp+6}, 6, v{vTmp+6}\nv_lshl_add_u32 v{vE1}, v{vTmp+6}, 4, v{vTmp+5}\nv_add_u32 v{vE1}, {8*16384}, v{vE1}")
a(f"s_mov_b32 s22, {1<<20}\ns_mov_b32 s23, 0x20000\ns_waitcnt lgkmcnt(0)\ns_mov_b32 s20, s10\ns_mov_b32 s21, s11")
a("s_barrier")
def dma_chunk(k,ldsbase):
    a(f"s_mov_b32 s{sK}, {k}")
    chunk_off(sOff,sK); a(f"s_lshl_b32 s{sOff}, s{sOff}, 7")
    for rg in range(4):
        for e in range(2):
            a(f"s_mov_b32 m0, {ldsbase+k*8192+rg*2048+e*1024}\ns_add_u32 s{sT}, s{sOff}, {rg*16*16384}")
            a(f"buffer_load_dwordx4 v{vE0+e}, s[20:23], s{sT} offen {EPOL} lds")
def setflag(flag,val):
    a(f"v_mov_b32 v{vH}, {val}\nds_write_b32 v{vFl}, v{vH} offset:{flag-L_FLAG}")
dma_chunk(0,L_E); dma_chunk(1,L_E)
a(f"s_lshl_b32 s{sT}, s{sGrp}, 15\ns_lshl_b32 s{sT+1}, s{sMem}, 10\ns_add_u32 s{sT}, s{sT}, s{sT+1}\ns_add_u32 s{sT}, s{sT}, {PS_OFF}\ns_add_u32 s24, s18, s{sT}\ns_addc_u32 s25, s19, 0")
a(f"s_lshl_b32 s{sT}, s{sGrp}, 16\ns_lshl_b32 s{sT+1}, s{sMem}, 9\ns_add_u32 s{sT}, s{sT}, s{sT+1}\ns_add_u32 s{sT}, s{sT}, {PO_OFF}\ns_add_u32 s26, s18, s{sT}\ns_addc_u32 s27, s19, 0")
for x in range(4): a(f"v_mov_b32 v{vW+x}, {SENT}")
a(f"v_lshlrev_b32 v{vH+1}, 4, v0\nv_add_u32 v{vH+2}, 16384, v{vH+1}")
a(f"global_store_dwordx4 v{vH+1}, v[{vW}:{vW+3}], s[24:25] sc1\nglobal_store_dwordx4 v{vH+2}, v[{vW}:{vW+3}], s[24:25] sc1")
a(f"v_and_b32 v{vH+3}, 31, v0\nv_lshlrev_b32 v{vH+3}, 4, v{vH+3}\nv_lshrrev_b32 v{vH+4}, 5, v0\nv_lshl_add_u32 v{vH+3}, v{vH+4}, 13, v{vH+3}")
for x in range(4):
    a(f"v_add_u32 v{vH+4}, {x*16384}, v{vH+3}\nglobal_store_dwordx4 v{vH+4}, v[{vW}:{vW+3}], s[26:27] sc1")
a("s_waitcnt vmcnt(14)"); setflag(F_ER,1)
dma_chunk(2,L_E)
a("s_waitcnt vmcnt(14)"); setflag(F_ER,2)
dma_chunk(3,L_E)
a("s_waitcnt vmcnt(8)"); setflag(F_ER,3)
a(f"s_lshl_b32 s{sT}, s{sGrp}, 4\nv_mov_b32 v{vH+1}, s{sT}\nv_mov_b32 v{vH+2}, 1\ns_mov_b64 exec, 1\nglobal_atomic_add v{vH+1}, v{vH+2}, s[16:17]\ns_mov_b64 exec, -1")
for k in range(4,8):
    dma_chunk(k,L_E)
    a("s_waitcnt vmcnt(8)"); setflag(F_ER,k)
a("s_mov_b32 s20, s12\ns_mov_b32 s21, s13")
dma_chunk(0,L_F)
a("s_waitcnt vmcnt(8)"); setflag(F_ER,8)
for k in range(1,8):
    dma_chunk(k,L_F); a("s_waitcnt vmcnt(8)")
a(f"v_bfe_u32 v{vTmp+2}, v0, 3, 1\nv_bfe_u32 v{vTmp+3}, v0, 4, 1\nv_mul_u32_u24 v{vTmp+3}, 6, v{vTmp+3}\nv_or_b32 v{vTmp+2}, v{vTmp+2}, v{vTmp+3}")
a(f"v_and_b32 v{vTmp+3}, 3, v0\nv_lshlrev_b32 v{vTmp+3}, 1, v{vTmp+3}\nv_xor_b32 v{vTmp+2}, v{vTmp+2}, v{vTmp+3}\nv_lshlrev_b32 v{vTmp+2}, 4, v{vTmp+2}")
a(f"v_bfe_u32 v{vTmp+3}, v0, 2, 2\nv_lshl_add_u32 v{vTmp+3}, v{vTmp+1}, 3, v{vTmp+3}\nv_lshl_add_u32 v{vTr}, v{vTmp+3}, 7, v{vTmp+2}\nv_add_u32 v{vTr}, {L_F}, v{vTr}")
a(f"v_xor_b32 v{vTr+1}, 16, v{vTr}\nv_xor_b32 v{vTr+2}, 64, v{vTr}\nv_add_u32 v{vTr+2}, 512, v{vTr+2}\nv_xor_b32 v{vTr+3}, 16, v{vTr+2}")
a(f"s_lshl_b32 s{sT}, s{sGrp}, 4\nv_mov_b32 v{vH+1}, s{sT}")
a(f"L_hinit:\nglobal_load_dword v{vH}, v{vH+1}, s[16:17] sc1\ns_waitcnt vmcnt(0)\nv_readfirstlane_b32 s{sT}, v{vH}\ns_cmp_ge_u32 s{sT}, 16\ns_cbranch_scc1 L_hinit_ok\ns_sleep 8\n{CAP}\ns_branch L_hinit\nL_hinit_ok:")
a(f"s_lshl_b32 s{sT}, s{sGrp}, 15\ns_add_u32 s{sT}, s{sT}, {PS_OFF}\ns_add_u32 s24, s18, s{sT}\ns_addc_u32 s25, s19, 0\ns_mov_b32 s26, 32768\ns_mov_b32 s27, 0x20000")
a(f"s_mov_b32 s{sSet}, 0\ns_mov_b32 s{sIdx}, {A.trigA}")
vLo=3; vPw=4; vPr=5; vWw=7
a(f"v_lshlrev_b32 v{vLo}, 4, v0")
a(f"v_lshlrev_b32 v{vPw}, 3, v0\nv_add_u32 v{vPw}, {L_P}, v{vPw}")
a(f"v_and_b32 v{vPr}, 3, v0\nv_lshlrev_b32 v{vPr}, 7, v{vPr}\nv_lshl_add_u32 v{vPr}, v{vTmp+1}, 4, v{vPr}\nv_add_u32 v{vPr}, {L_P}, v{vPr}")
a(f"v_and_b32 v{vWw}, 3, v0\nv_lshlrev_b32 v{vWw}, 8, v{vWw}\nv_lshl_add_u32 v{vWw}, v{vTmp+1}, 6, v{vWw}\nv_add_u32 v{vWw}, {L_W}, v{vWw}")
a(f"s_mov_b32 s{sM}, 0x000f000f\ns_mov_b32 s{sM+1}, 0x000f000f")
a("L_hset:")
lds_wait_ge(F_PROG,sIdx,tmpv=vH,sleep=8)
a(f"s_lshl_b32 s{sK1}, s{sSet}, 14")
a("L_hpoll:")
for m in range(16):
    if m%4==0: a(f"s_add_u32 s{sT+1}, s{sK1}, {m*1024}")
    a(f"buffer_load_dwordx4 v[{vL+4*m}:{vL+4*m+3}], v{vLo}, s[24:27], s{sT+1} offen offset:{(m%4)*1024} sc1")
a("s_waitcnt vmcnt(0)")
a(f"v_max3_u32 v{vH}, v{vL}, v{vL+1}, v{vL+2}")
for x in range(3,63,2): a(f"v_max3_u32 v{vH}, v{vH}, v{vL+x}, v{vL+x+1}")
a(f"v_max_u32 v{vH}, v{vH}, v{vL+63}\nv_cmp_eq_u32 vcc, {SENT}, v{vH}\ns_nop 4\ns_cbranch_vccz L_hgot\ns_sleep 16\n{CAP}\ns_branch L_hpoll\nL_hgot:")
for m in range(1,16):
    for x in range(4): a(f"v_add_f32 v{vL+x}, v{vL+x}, v{vL+4*m+x}")
X=vL; T=vH
for x in range(4):
    a(f"v_cvt_pk_bf16_f32 v{X+x}, v{X+x}, v{X+x}\nv_and_b32 v{X+x}, 0xffff0000, v{X+x}\nv_mul_f32 v{X+x}, 0x3db504f3, v{X+x}")
    a(f"v_cvt_pk_bf16_f32 v{X+x}, v{X+x}, v{X+x}\nv_and_b32 v{X+x}, 0xffff0000, v{X+x}")
a(f"v_max3_f32 v{T}, v{X}, v{X+1}, v{X+2}\nv_max_f32 v{T}, v{T}, v{X+3}")
for sh in (8,4,2,1): a(f"s_nop 1\nv_max_f32_dpp v{T}, v{T}, v{T} row_ror:{sh} row_mask:0xf bank_mask:0xf")
for x in range(4): a(f"v_sub_f32 v{X+x}, v{X+x}, v{T}\nv_mul_f32 v{X+x}, 0x3fb8aa3b, v{X+x}\nv_exp_f32 v{X+x}, v{X+x}")
a(f"s_nop 0\nv_add_f32 v{T}, v{X}, v{X+1}\nv_add_f32 v{T+1}, v{X+2}, v{X+3}\nv_add_f32 v{T}, v{T}, v{T+1}")
for sh in (8,4,2,1): a(f"s_nop 1\nv_add_f32_dpp v{T}, v{T}, v{T} row_ror:{sh} row_mask:0xf bank_mask:0xf")
a(f"v_rcp_f32 v{T}, v{T}\ns_nop 0")
for x in range(4): a(f"v_mul_f32 v{X+x}, v{X+x}, v{T}")
a(f"v_cvt_pk_bf16_f32 v{T+2}, v{X}, v{X+1}\nv_cvt_pk_bf16_f32 v{T+3}, v{X+2}, v{X+3}\nds_write_b64 v{vPw}, v[{T+2}:{T+3}]\ns_waitcnt lgkmcnt(0)")
a(f"ds_read_b128 v[{vP}:{vP+3}], v{vPr}\nds_read_b128 v[{vP+4}:{vP+7}], v{vPr} offset:64\ns_waitcnt lgkmcnt(0)")
a(f"s_mov_b32 s{sK}, 8")
a("L_hw:")
for nt in range(4):
    for kt in range(2):
        for h in range(2):
            r=vA+8*nt+4*kt+2*h
            a(f"ds_read_b64_tr_b16 v[{r}:{r+1}], v{vTr+2*h+(nt>>1)} offset:{kt*4096+(nt&1)*8}")
for nt in range(4):
    a(f"s_waitcnt lgkmcnt({12-4*nt})")
    c=vW+4*nt; r=vA+8*nt
    a(f"v_mfma_f32_16x16x32_bf16 v[{c}:{c+3}], v[{r}:{r+3}], v[{vP}:{vP+3}], 0")
    a(f"v_mfma_f32_16x16x32_bf16 v[{c}:{c+3}], v[{r+4}:{r+7}], v[{vP+4}:{vP+7}], v[{c}:{c+3}]")
for x in range(4): a(f"v_add_u32 v{vTr+x}, 8192, v{vTr+x}")
a(f"s_nop 7\ns_mov_b64 exec, s[{sM}:{sM+1}]")
for nt in range(4): a(f"ds_write_b128 v{vWw}, v[{vW+4*nt}:{vW+4*nt+3}] offset:{nt*16}")
a(f"s_mov_b64 exec, -1\nv_add_u32 v{vWw}, 1024, v{vWw}\ns_waitcnt lgkmcnt(0)")
a(f"s_sub_u32 s{sK}, s{sK}, 1\ns_cmp_lg_u32 s{sK}, 0\ns_cbranch_scc1 L_hw")
for x in range(4): a(f"v_subrev_u32 v{vTr+x}, 65536, v{vTr+x}")
a(f"s_add_u32 s{sSet}, s{sSet}, 1\nv_mov_b32 v{vH}, s{sSet}\nds_write_b32 v{vFl}, v{vH} offset:{F_WR-L_FLAG}")
a(f"s_mov_b32 s{sIdx}, {A.trigB}\ns_cmp_lt_u32 s{sSet}, 2\ns_cbranch_scc1 L_hset")
a(f"s_cmp_ge_u32 s{sMem}, 8\ns_cbranch_scc1 L_end")
a(f"s_cmp_lt_u32 s{sMem}, 4\ns_cselect_b32 s{sIdx}, {A.trigFA}, 32")
a(f"s_lshl_b32 s{sT}, s{sGrp}, 3\ns_add_u32 s{sT+2}, s{sT}, s{sMem}\ns_lshl_b32 s{sT}, s{sT+2}, 13\ns_add_u32 s{sT}, s{sT}, {PO_OFF}\ns_add_u32 s24, s18, s{sT}\ns_addc_u32 s25, s19, 0\ns_mov_b32 s26, 8192")
a(f"s_lshl_b32 s{sT+2}, s{sT+2}, 8\ns_add_u32 s14, s14, s{sT+2}\ns_addc_u32 s15, s15, 0\nv_lshlrev_b32 v{vPw}, 3, v0\ns_mov_b32 s{sT+3}, 4096")
lds_wait_ge(F_PROG,sIdx,tmpv=vH,sleep=2)
a("L_fpoll:")
for t in range(8):
    a(f"buffer_load_dwordx4 v[{vL+4*t}:{vL+4*t+3}], v{vLo}, s[24:27], {'0' if t<4 else 's%d'%(sT+3)} offen offset:{(t%4)*1024} sc1")
a("s_waitcnt vmcnt(0)")
a(f"v_max3_u32 v{vH}, v{vL}, v{vL+1}, v{vL+2}")
for x in range(3,31,2): a(f"v_max3_u32 v{vH}, v{vH}, v{vL+x}, v{vL+x+1}")
a(f"v_max_u32 v{vH}, v{vH}, v{vL+31}\nv_cmp_eq_u32 vcc, {SENT}, v{vH}\ns_nop 4\ns_cbranch_vccz L_fgot\ns_sleep {A.fsleep}\n{CAP}\ns_branch L_fpoll\nL_fgot:")
for t in range(1,8):
    for x in range(4): a(f"v_add_f32 v{vL+x}, v{vL+x}, v{vL+4*t+x}")
for x in range(4): a(f"v_mov_b32 v{vL+4+x}, v{vL+x}")
a("s_nop 1")
for x in range(4): a(f"v_permlane32_swap_b32 v{vL+x}, v{vL+4+x}")
for x in range(4): a(f"v_add_f32 v{vL+x}, v{vL+x}, v{vL+4+x}")
a(f"v_cvt_pk_bf16_f32 v{vH}, v{vL}, v{vL+1}\nv_cvt_pk_bf16_f32 v{vH+1}, v{vL+2}, v{vL+3}\ns_mov_b32 exec_hi, 0\nglobal_store_dwordx2 v{vPw}, v[{vH}:{vH+1}], s[14:15]")
if A.diag==1:
    a(f"s_waitcnt vmcnt(0)\ns_memrealtime s[{sTS+2}:{sTS+3}]\ns_lshl_b32 s{sT}, s2, 3\ns_add_u32 s{sT}, s{sT}, 0x10000\ns_waitcnt lgkmcnt(0)\ns_mov_b64 exec, 1\nv_mov_b32 v7, s{sT}\nv_mov_b32 v10, s{sTS+2}\nv_mov_b32 v11, s{sTS+3}\nglobal_store_dwordx2 v7, v[10:11], s[18:19]")
if A.diag>1:
    a(f"s_waitcnt vmcnt(0)\ns_memrealtime s[{sTS+2}:{sTS+3}]\ns_waitcnt lgkmcnt(0)\ns_mov_b64 exec, 1\nv_mov_b32 v7, 0\nv_mov_b32 v10, s{sTS+2}\nglobal_atomic_umax v7, v10, s[16:17] offset:12\nv_mov_b32 v11, s{sTS}\nv_not_b32 v11, v11\nglobal_atomic_umax v7, v11, s[16:17] offset:4\nv_subrev_u32 v12, s{sTS}, v10\nglobal_atomic_umax v7, v12, s[16:17] offset:8")
a("L_end:\ns_endpgm")
print(emit(A.out,[(NAME,a.text(),NV,80,None)],[(NAME,256,320,LDS_BYTES)]))
```

```python
import sys, argparse
from common import *
ap=argparse.ArgumentParser()
ap.add_argument("out"); ap.add_argument("--pol",default="nt"); ap.add_argument("--epol",default="")
ap.add_argument("--order",default="cyc"); ap.add_argument("--rot",default="grp"); ap.add_argument("--diag",type=int,default=0)
ap.add_argument("--trigA",type=int,default=12); ap.add_argument("--trigB",type=int,default=20)
ap.add_argument("--fsleep",type=int,default=1); ap.add_argument("--S",type=int,default=3); ap.add_argument("--LA",type=int,default=2)
ap.add_argument("--apol",default="nt"); ap.add_argument("--ppol",default=""); ap.add_argument("--cstride",type=int,default=4352)
ap.add_argument("--nogather",type=int,default=0)
A=ap.parse_args()
POL=A.pol; EPOL=A.epol; S=A.S; J0=24+S; NPOOL=16*(8-S); LA=A.LA
NAME=KNAME+"_kernel"
PS_OFF=0x100000
PO_OFF=0x200000
CN_OFF=0x300000
L_E=0; L_F=65536; L_W=131072; L_WP=L_W+16384; L_P=L_WP+4096; L_FLAG=L_P+512; LDS_BYTES=L_FLAG+64
F_ER=0; F_WR=4; F_PROG=16; F_MB=32
SENT=-1; END=0xff
vKoff=1; vLr=2; vLa=4; vFl=6; vSt=7
vT=8; vTmp=16; vQ=24; vQB=28; vBh=32; vBl=36; vAcc=40; vFr=56; vBuf=88; vPg=152; NV=153
vTA=24
sWave=3; sMem=32; sGrp=33; sHead=34; sK=40; sK1=41; sOff=42; sSet=43; sIdx=44; sRot=45
sNB=46; sLast=48; sVA=50; sVB=52; sT=54
sM=60; sTS=68; sCap=72
a=Asm()
CAP=f"s_sub_u32 s{sCap}, s{sCap}, 1\ns_cbranch_scc1 L_end"
def chunk_id(dst,k,mem=sMem):
    a(f"s_add_u32 s{dst}, s{k}, s{sRot}\ns_and_b32 s{dst}, s{dst}, 7")
    if A.order=="cyc": a(f"s_lshl_b32 s{dst}, s{dst}, 4\ns_add_u32 s{dst}, s{dst}, s{mem}")
    else: a(f"s_lshl_b32 s{sT+5}, s{mem}, 3\ns_add_u32 s{dst}, s{dst}, s{sT+5}")
def issue_load(j):
    r=vBuf+4*j
    a(f"buffer_load_dwordx4 v[{r}:{r+3}], v{vKoff}, s[20:23], s{sOff} offen offset:{j*256} {POL}")
uid=[0]
def lds_wait_ge(flag,val,tmpv=vTmp,sleep=1):
    uid[0]+=1; L=f"L_w{uid[0]}"
    a(f"{L}:\nds_read_b32 v{tmpv}, v{vFl} offset:{flag}\ns_waitcnt lgkmcnt(0)\nv_readfirstlane_b32 s{sT}, v{tmpv}")
    a(f"s_cmp_ge_u32 s{sT}, {val}\ns_cbranch_scc1 {L}_ok\ns_sleep {sleep}\n{CAP}\ns_branch {L}\n{L}_ok:")
def prog_wait_ge(val,t,sleep):
    uid[0]+=1; L=f"L_w{uid[0]}"
    a(f"{L}:\nds_read_b128 v[{t}:{t+3}], v{vFl} offset:{F_PROG}\ns_waitcnt lgkmcnt(0)\nv_min3_u32 v{t}, v{t}, v{t+1}, v{t+2}\nv_min_u32 v{t}, v{t}, v{t+3}\ns_nop 0\nv_readfirstlane_b32 s{sT}, v{t}")
    a(f"s_cmp_ge_u32 s{sT}, {val}\ns_cbranch_scc1 {L}_ok\ns_sleep {sleep}\n{CAP}\ns_branch {L}\n{L}_ok:")

a(f"s_cmp_ge_u32 s2, 256\ns_cbranch_scc1 L_end")
a("s_load_dwordx4 s[4:7], s[0:1], 0\ns_load_dwordx4 s[8:11], s[0:1], 16\ns_load_dwordx4 s[12:15], s[0:1], 32\ns_load_dwordx4 s[16:19], s[0:1], 48")
if A.diag: a(f"s_memrealtime s[{sTS}:{sTS+1}]")
a(f"v_lshrrev_b32 v1, 6, v0\nv_and_b32 v0, 63, v0\nv_readfirstlane_b32 s{sWave}, v1")
a(f"s_and_b32 s{sMem}, s2, 15\ns_lshr_b32 s{sGrp}, s2, 4")
if A.rot=="none": a(f"s_mov_b32 s{sRot}, 0")
elif A.rot=="grp": a(f"s_mov_b32 s{sRot}, s{sGrp}")
a(f"v_mov_b32 v{vFl}, {L_FLAG}\ns_mov_b32 s{sCap}, 0x10000")
a(f"v_and_b32 v{vTmp}, 15, v0\nv_lshrrev_b32 v{vTmp+1}, 4, v0")
a(f"s_cmp_eq_u32 s{sWave}, 4\ns_cbranch_scc1 L_helper")
a(f"s_lshl_b32 s{sHead}, s{sGrp}, 3\ns_add_u32 s{sHead}, s{sHead}, s{sWave}")
a(f"v_lshlrev_b32 v{vKoff}, 4, v{vTmp}\nv_lshlrev_b32 v{vTmp+2}, 4, v{vTmp}\nv_lshl_add_u32 v{vKoff}, v{vTmp+1}, 12, v{vKoff}")
a(f"s_mov_b32 s{sK}, 0")
chunk_id(sOff,sK); a(f"s_lshl_b32 s{sOff}, s{sOff}, 14")
a(f"s_lshl_b32 s{sT}, s{sHead}, 21\ns_lshl_b32 s{sT+1}, s{sHead}, 8\ns_mov_b32 s22, {2<<20}\ns_mov_b32 s23, 0x20000")
a("s_waitcnt lgkmcnt(0)")
a(f"s_add_u32 s20, s6, s{sT}\ns_addc_u32 s21, s7, 0\ns_add_u32 s4, s4, s{sT+1}\ns_addc_u32 s5, s5, 0")
a(f"global_load_dwordx4 v[{vQ}:{vQ+3}], v{vTmp+2}, s[4:5]")
for j in range(16): issue_load(j)
a(f"global_load_dwordx4 v[{vQB}:{vQB+3}], v{vTmp+2}, s[4:5] offset:1024")
a(f"s_add_u32 s{sNB}, s20, {8<<20}\ns_addc_u32 s{sNB+1}, s21, 0")
a(f"s_add_u32 s{sVA}, s8, s{sT}\ns_addc_u32 s{sVA+1}, s9, 0\ns_add_u32 s{sVB}, s{sVA}, {8<<20}\ns_addc_u32 s{sVB+1}, s{sVA+1}, 0")
a(f"v_bfe_u32 v{vTmp+2}, v0, 1, 1\nv_bfe_u32 v{vTmp+3}, v0, 2, 1\nv_bfe_u32 v{vTmp+4}, v0, 3, 1")
a(f"v_xor_b32 v{vTmp+3}, v{vTmp+3}, v{vTmp+4}\nv_lshl_or_b32 v{vTmp+2}, v{vTmp+4}, 1, v{vTmp+2}\nv_lshl_or_b32 v{vTmp+2}, v{vTmp+3}, 2, v{vTmp+2}")
a(f"v_lshlrev_b32 v{vTmp+3}, 1, v{vTmp+1}\nv_xor_b32 v{vTmp+2}, v{vTmp+2}, v{vTmp+3}\nv_lshlrev_b32 v{vTmp+2}, 4, v{vTmp+2}")
a(f"v_lshl_add_u32 v{vLr}, v{vTmp}, 7, v{vTmp+2}\nv_xor_b32 v{vLr+1}, 16, v{vLr}")
a(f"v_lshlrev_b32 v{vTmp+2}, 6, v{vTmp}\nv_lshl_add_u32 v{vSt}, v{vTmp+1}, 4, v{vTmp+2}")
for x,mk in enumerate((0xAAAAAAAA,0xCCCCCCCC,0x000F000F)):
    a(f"s_mov_b32 s{sM+2*x}, {mk:#x}\ns_mov_b32 s{sM+2*x+1}, {mk:#x}")
a(f"s_lshl_b32 s{sT}, s{sGrp}, 15\ns_lshl_b32 s{sT+1}, s{sMem}, 10\ns_add_u32 s{sT}, s{sT}, s{sT+1}\ns_lshl_b32 s{sT+1}, s{sWave}, 8\ns_add_u32 s{sT}, s{sT}, s{sT+1}\ns_add_u32 s{sT}, s{sT}, {PS_OFF}")
a(f"s_add_u32 s24, s18, s{sT}\ns_addc_u32 s25, s19, 0")
a(f"s_lshl_b32 s{sT}, s{sGrp}, 16\ns_lshl_b32 s{sT+1}, s{sMem}, 9\ns_add_u32 s{sT}, s{sT}, s{sT+1}\ns_lshl_b32 s{sT+1}, s{sWave}, 13\ns_add_u32 s{sT}, s{sT}, s{sT+1}\ns_add_u32 s{sT}, s{sT}, {PO_OFF}")
a(f"s_add_u32 s26, s18, s{sT}\ns_addc_u32 s27, s19, 0")
a(f"s_lshl_b32 s{sT}, s{sWave}, 2\ns_add_u32 s{sT}, s{sT}, {L_FLAG+F_PROG}\nv_mov_b32 v{vPg}, s{sT}")
for x in range(16): a(f"v_mov_b32 v{vAcc+x}, 0")
a(f"s_mov_b32 s{sSet}, 0\ns_mov_b32 s{sIdx}, 0\ns_mov_b32 s{sLast}, 0")
a("s_barrier")
def progress():
    if A.diag==1: a(f"s_memrealtime s[{sTS+2}:{sTS+3}]\ns_waitcnt lgkmcnt(0)\ns_mov_b32 m0, s{sIdx}\ns_nop 0\nv_writelane_b32 v153, s{sTS+2}, m0")
    a(f"s_add_u32 s{sIdx}, s{sIdx}, 1\nv_mov_b32 v{vTmp}, s{sIdx}\nds_write_b32 v{vPg}, v{vTmp}")
a("L_kloop:")
a(f"s_add_u32 s{sK1}, s{sK}, 1\ns_and_b32 s{sK1}, s{sK1}, 7\ns_cbranch_scc1 L_ndk\ns_mov_b32 s20, s{sNB}\ns_mov_b32 s21, s{sNB+1}\nL_ndk:")
chunk_id(sOff,sK1); a(f"s_lshl_b32 s{sOff}, s{sOff}, 14")
a(f"s_lshl_b32 s{sT+1}, s{sK}, 13\nv_add_u32 v{vLa}, s{sT+1}, v{vLr}\nv_add_u32 v{vLa+1}, s{sT+1}, v{vLr+1}")
for b in range(2):
    for jj in range(8):
        j=8*b+jj; r=vBuf+4*j
        a("s_waitcnt vmcnt(15)")
        a(f"v_dot2_f32_bf16 v{vT+jj}, v{r}, v{vQ}, 0")
        for x in range(1,4): a(f"v_dot2_f32_bf16 v{vT+jj}, v{r+x}, v{vQ+x}, v{vT+jj}")
        issue_load(j)
        if b==0 and jj==5:
            a(f"s_add_u32 s{sT+1}, s{sK}, 1")
            lds_wait_ge(F_ER,f"s{sT+1}")
            for bb in range(2):
                for rt in range(4):
                    rr=vFr+16*bb+4*rt
                    a(f"ds_read_b128 v[{rr}:{rr+3}], v{vLa+bb} offset:{rt*2048}")
    a("s_nop 2")
    for p in range(4):
        t0=vT+2*p; t1=t0+1
        a(f"v_cvt_pk_bf16_f32 v{vBh+p}, v{t0}, v{t1}")
        a(f"v_lshlrev_b32 v{vTmp}, 16, v{vBh+p}\nv_and_b32 v{vTmp+1}, 0xffff0000, v{vBh+p}")
        a(f"v_sub_f32 v{vTmp}, v{t0}, v{vTmp}\nv_sub_f32 v{vTmp+1}, v{t1}, v{vTmp+1}")
        a(f"v_cvt_pk_bf16_f32 v{vBl+p}, v{vTmp}, v{vTmp+1}")
    a("s_waitcnt lgkmcnt(0)\ns_nop 0" if b==0 else "s_nop 1")
    for B in (vBh,vBl):
        for rt in range(4):
            r=vFr+16*b+4*rt; c=vAcc+4*rt
            a(f"v_mfma_f32_16x16x32_bf16 v[{c}:{c+3}], v[{r}:{r+3}], v[{B}:{B+3}], v[{c}:{c+3}]")
progress()
a(f"s_mov_b32 s{sK}, s{sK1}\ns_cmp_lg_u32 s{sK}, 0\ns_cbranch_scc1 L_kloop")
a("s_nop 7")
for sh in (8,4,2,1):
    for x in range(16): a(f"v_add_f32_dpp v{vAcc+x}, v{vAcc+x}, v{vAcc+x} row_ror:{sh} row_mask:0xf bank_mask:0xf")
for x in range(4):
    a(f"v_cndmask_b32 v{vAcc+x}, v{vAcc+x}, v{vAcc+4+x}, s[{sM}:{sM+1}]\nv_cndmask_b32 v{vAcc+8+x}, v{vAcc+8+x}, v{vAcc+12+x}, s[{sM}:{sM+1}]")
for x in range(4): a(f"v_cndmask_b32 v{vAcc+x}, v{vAcc+x}, v{vAcc+8+x}, s[{sM+2}:{sM+3}]")
a(f"v_mov_b32 v{vTmp+4}, 0x7fc00000")
for x in range(4): a(f"v_cmp_eq_u32 vcc, {SENT}, v{vAcc+x}\ns_nop 1\nv_cndmask_b32 v{vTmp+x}, v{vAcc+x}, v{vTmp+4}, vcc")
a(f"s_mov_b64 exec, s[{sM+4}:{sM+5}]\nglobal_store_dwordx4 v{vSt}, v[{vTmp}:{vTmp+3}], s[24:25] sc1\ns_mov_b64 exec, -1")
for x in range(16): a(f"v_mov_b32 v{vAcc+x}, 0")
for x in range(4): a(f"v_mov_b32 v{vQ+x}, v{vQB+x}")
a(f"s_add_u32 s24, s24, 16384\ns_addc_u32 s25, s25, 0\ns_mov_b32 s{sNB}, s{sVA}\ns_mov_b32 s{sNB+1}, s{sVA+1}")
a(f"s_add_u32 s{sSet}, s{sSet}, 1\ns_cmp_lt_u32 s{sSet}, 2\ns_cbranch_scc1 L_kloop")
a(f"s_lshl_b32 s{sT}, s{sWave}, 8\ns_add_u32 s{sT}, s{sT}, {L_W}\nv_lshrrev_b32 v{vTmp+1}, 4, v0\nv_lshl_add_u32 v{vLr}, v{vTmp+1}, 6, s{sT}\nv_add_u32 v{vLr+1}, {L_WP-L_W}, v{vLr}")
a(f"v_and_b32 v{vTmp}, 15, v0\nv_lshlrev_b32 v{vTmp}, 5, v{vTmp}\nv_and_b32 v{vSt}, 16, v0\nv_add_u32 v{vSt}, v{vSt}, v{vTmp}\nv_lshrrev_b32 v{vTmp}, 5, v0\nv_lshl_add_u32 v{vSt}, v{vTmp}, 15, v{vSt}")
for x in range(8): a(f"v_mov_b32 v{vT+x}, 0")
lds_wait_ge(F_WR,1)
a("L_vloop:")
a(f"s_cmp_ge_u32 s{sIdx}, {J0}\ns_cbranch_scc1 L_vpool")
a(f"v_mov_b32 v{vLa}, v{vLr}\nv_add_u32 v{vLr}, 1024, v{vLr}")
a(f"s_cmp_lg_u32 s{sIdx}, 24\ns_cbranch_scc1 L_vw")
for x in range(8): a(f"v_mov_b32 v{vTA+x}, v{vT+x}\nv_mov_b32 v{vT+x}, 0")
lds_wait_ge(F_WR,2)
a("s_branch L_vw\nL_vpool:")
a(f"s_and_b32 s{sT+1}, s{sIdx}, 3\ns_lshl_b32 s{sT+1}, s{sT+1}, 10\nv_add_u32 v{vLa}, s{sT+1}, v{vLr+1}")
lds_wait_ge(F_WR,f"s{sIdx}")
a("L_vw:")
for x in range(4): a(f"ds_read_b128 v[{vAcc+4*x}:{vAcc+4*x+3}], v{vLa} offset:{16*x}")
a(f"s_add_u32 s{sK1}, s{sIdx}, 1\ns_cmp_ge_u32 s{sK1}, {J0}\ns_cbranch_scc1 L_vmb")
a(f"s_and_b32 s{sK1}, s{sK1}, 7\ns_cbranch_scc1 L_ndv\ns_mov_b32 s20, s{sVB}\ns_mov_b32 s21, s{sVB+1}\nL_ndv:")
chunk_id(sOff,sK1)
a("s_branch L_vgo\nL_vmb:")
a(f"s_and_b32 s{sT+1}, s{sK1}, 3\ns_lshl_b32 s{sT+1}, s{sT+1}, 2\nv_add_u32 v{vLa+1}, s{sT+1}, v{vFl}")
a(f"L_vmbp:\nds_read_b32 v{vTmp}, v{vLa+1} offset:{F_MB}\ns_waitcnt lgkmcnt(0)\nv_readfirstlane_b32 s{sOff}, v{vTmp}\ns_lshr_b32 s{sT}, s{sOff}, 16\ns_cmp_eq_u32 s{sT}, s{sK1}\ns_cbranch_scc1 L_vmbok\ns_sleep 1\n{CAP}\ns_branch L_vmbp\nL_vmbok:")
a(f"s_and_b32 s{sOff}, s{sOff}, 0xff\ns_cmp_eq_u32 s{sOff}, {END}\ns_cselect_b32 s22, 0, s22\ns_cselect_b32 s{sLast}, 1, 0")
a(f"L_vgo:\ns_lshl_b32 s{sOff}, s{sOff}, 14")
for j in range(16):
    r=vBuf+4*j; w=vAcc+j
    a("s_waitcnt vmcnt(15)" + (f" lgkmcnt({3-j//4})" if j%4==0 else ""))
    for x in range(4):
        a(f"v_lshlrev_b32 v{vTmp+2*x}, 16, v{r+x}\nv_and_b32 v{vTmp+2*x+1}, 0xffff0000, v{r+x}")
    issue_load(j)
    for x in range(8): a(f"v_fmac_f32 v{vT+x}, v{w}, v{vTmp+x}")
progress()
a(f"s_cmp_eq_u32 s{sLast}, 0\ns_cbranch_scc1 L_vloop")
for x in range(4): a(f"v_permlane16_swap_b32 v{vTA+x}, v{vTA+4+x}")
for x in range(4): a(f"v_permlane16_swap_b32 v{vT+x}, v{vT+4+x}")
for x in range(4): a(f"v_add_f32 v{vTA+x}, v{vTA+x}, v{vTA+4+x}")
for x in range(4): a(f"v_add_f32 v{vT+x}, v{vT+x}, v{vT+4+x}")
a(f"v_mov_b32 v{vTmp+4}, 0x7fc00000\ns_nop 0")
for x in range(4): a(f"v_permlane32_swap_b32 v{vTA+x}, v{vT+x}")
for x in range(4): a(f"v_add_f32 v{vT+x}, v{vT+x}, v{vTA+x}")
for x in range(4): a(f"v_cmp_eq_u32 s[{sT+2*(x&1)}:{sT+2*(x&1)+1}], {SENT}, v{vT+x}\ns_nop 1\nv_cndmask_b32 v{vBh+x}, v{vT+x}, v{vTmp+4}, s[{sT+2*(x&1)}:{sT+2*(x&1)+1}]")
a(f"global_store_dwordx4 v{vSt}, v[{vBh}:{vBh+3}], s[26:27] sc1")
a(f"v_mov_b32 v{vTmp}, 0xffff\nds_write_b32 v{vPg}, v{vTmp}")
if A.diag==1:
    a(f"s_memrealtime s[{sTS+2}:{sTS+3}]\ns_lshl_b32 s{sT}, s2, 2\ns_add_u32 s{sT}, s{sT}, s{sWave}\ns_lshl_b32 s{sT}, s{sT}, 5\ns_getreg_b32 s{sT+1}, hwreg(HW_REG_XCC_ID)\ns_waitcnt lgkmcnt(0)")
    a(f"v_mov_b32 v8, s{sTS}\nv_mov_b32 v9, s{sTS+1}\nv_mov_b32 v10, s{sTS+2}\nv_mov_b32 v11, s{sTS+3}\nv_mov_b32 v12, s{sT+1}\nv_mov_b32 v13, s{sIdx}\nv_mov_b32 v14, 0\nv_mov_b32 v15, 0\nv_mov_b32 v7, s{sT}")
    a(f"s_lshl_b32 s{sT}, s{sT}, 3\ns_add_u32 s{sT}, s{sT}, 0x1000000\nv_lshl_add_u32 v16, v0, 2, s{sT}\nglobal_store_dword v16, v153, s[18:19]")
    a("s_mov_b64 exec, 1\nglobal_store_dwordx4 v7, v[8:11], s[18:19]\nglobal_store_dwordx4 v7, v[12:15], s[18:19] offset:16")
a("s_endpgm")
a("L_helper:")
vE0=1; vE1=2; vLo=3; vPw=4; vPr=5; vWw=7; vTr=8; vH=12; vP=24; vW=32; vA=48; vL=80; vTc=144; vWc=148; vTk=149; vZ=150; vOne=151
for x in range(4): a(f"v_mov_b32 v{vH+x}, 0\nv_mov_b32 v{vW+x}, {SENT}")
a(f"ds_write_b128 v{vFl}, v[{vH}:{vH+3}]\nds_write_b128 v{vFl}, v[{vH}:{vH+3}] offset:16\nds_write_b128 v{vFl}, v[{vH}:{vH+3}] offset:32")
a(f"v_bfe_u32 v{vTmp+2}, v0, 4, 1\nv_bfe_u32 v{vTmp+3}, v0, 5, 1\nv_and_b32 v{vTmp+4}, 7, v0\nv_lshrrev_b32 v{vTmp+5}, 3, v0\nv_lshlrev_b32 v{vTmp+5}, 14, v{vTmp+5}")
a(f"v_lshl_or_b32 v{vTmp+6}, v{vTmp+3}, 2, v{vTmp+2}\nv_xor_b32 v{vTmp+6}, v{vTmp+6}, v{vTmp+4}")
a(f"v_lshl_add_u32 v{vE0}, v{vTmp+6}, 4, v{vTmp+5}")
a(f"v_xor_b32 v{vTmp+6}, 6, v{vTmp+6}\nv_lshl_add_u32 v{vE1}, v{vTmp+6}, 4, v{vTmp+5}\nv_add_u32 v{vE1}, {8*16384}, v{vE1}")
a(f"v_lshlrev_b32 v{vLo}, 4, v0\nv_add_u32 v{vA}, 16384, v{vLo}")
a(f"v_and_b32 v{vA+1}, 31, v0\nv_lshlrev_b32 v{vA+1}, 4, v{vA+1}\nv_lshrrev_b32 v{vA+2}, 5, v0\nv_lshl_add_u32 v{vA+1}, v{vA+2}, 13, v{vA+1}")
for x in range(1,4): a(f"v_add_u32 v{vA+1+x}, {x*16384}, v{vA+1}")
a(f"v_mov_b32 v{vZ}, 0\nv_mov_b32 v{vOne}, 1")
a(f"s_lshl_b32 s{sT}, s{sGrp}, 15\ns_lshl_b32 s{sT+1}, s{sMem}, 10\ns_add_u32 s{sT}, s{sT}, s{sT+1}\ns_add_u32 s{sT}, s{sT}, {PS_OFF}")
a(f"s_lshl_b32 s{sT+2}, s{sGrp}, 16\ns_lshl_b32 s{sT+1}, s{sMem}, 9\ns_add_u32 s{sT+2}, s{sT+2}, s{sT+1}\ns_add_u32 s{sT+2}, s{sT+2}, {PO_OFF}")
a(f"s_mul_i32 s{sT+3}, s{sGrp}, {A.cstride}\ns_add_u32 s{sT+3}, s{sT+3}, {CN_OFF}")
a(f"s_mov_b32 s22, {1<<20}\ns_mov_b32 s23, 0x20000\ns_waitcnt lgkmcnt(0)\ns_mov_b32 s20, s10\ns_mov_b32 s21, s11")
a(f"s_add_u32 s24, s18, s{sT}\ns_addc_u32 s25, s19, 0\ns_add_u32 s26, s18, s{sT+2}\ns_addc_u32 s27, s19, 0\ns_add_u32 s28, s18, s{sT+3}\ns_addc_u32 s29, s19, 0")
def dma(ldsbase,pol):
    a(f"s_lshl_b32 s{sOff}, s{sOff}, 7")
    for rg in range(4):
        for e in range(2):
            if isinstance(ldsbase,int): a(f"s_mov_b32 m0, {ldsbase+rg*2048+e*1024}")
            else: a(f"s_add_u32 m0, {ldsbase}, {rg*2048+e*1024}")
            a(f"s_add_u32 s{sT}, s{sOff}, {rg*16*16384}")
            a(f"buffer_load_dwordx4 v{vE0+e}, s[20:23], s{sT} offen {pol} lds")
def dma_chunk(k,base):
    a(f"s_mov_b32 s{sK}, {k}"); chunk_id(sOff,sK); dma(base+k*8192,EPOL)
def setflag(flag,val):
    a(f"v_mov_b32 v{vH}, {val}\nds_write_b32 v{vFl}, v{vH} offset:{flag}")
dma_chunk(0,L_E)
a(f"global_store_dwordx4 v{vLo}, v[{vW}:{vW+3}], s[24:25] sc1\nglobal_store_dwordx4 v{vA}, v[{vW}:{vW+3}], s[24:25] sc1")
for x in range(4): a(f"global_store_dwordx4 v{vA+1+x}, v[{vW}:{vW+3}], s[26:27] sc1")
a(f"s_cmp_eq_u32 s{sMem}, 0\ns_cbranch_scc0 L_hnz\ns_mov_b64 exec, 1\nglobal_store_dword v{vZ}, v{vZ}, s[28:29] sc1\ns_mov_b64 exec, -1\nL_hnz:")
dma_chunk(1,L_E)
a("s_barrier")
a("s_waitcnt vmcnt(14)"); setflag(F_ER,1)
dma_chunk(2,L_E)
a("s_waitcnt vmcnt(8)"); setflag(F_ER,2)
a(f"s_lshl_b32 s{sT}, s{sGrp}, 4\nv_mov_b32 v{vH+1}, s{sT}\ns_mov_b64 exec, 1\nglobal_atomic_add v{vH+1}, v{vOne}, s[16:17]\ns_mov_b64 exec, -1")
for k in range(3,8):
    dma_chunk(k,L_E)
    a("s_waitcnt vmcnt(8)"); setflag(F_ER,k)
a("s_mov_b32 s20, s12\ns_mov_b32 s21, s13")
dma_chunk(0,L_F)
a("s_waitcnt vmcnt(8)"); setflag(F_ER,8)
for k in range(1,8):
    dma_chunk(k,L_F); a("s_waitcnt vmcnt(8)")
a(f"v_bfe_u32 v{vTmp+2}, v0, 3, 1\nv_bfe_u32 v{vTmp+3}, v0, 4, 1\nv_mul_u32_u24 v{vTmp+3}, 6, v{vTmp+3}\nv_or_b32 v{vTmp+2}, v{vTmp+2}, v{vTmp+3}")
a(f"v_and_b32 v{vTmp+3}, 3, v0\nv_lshlrev_b32 v{vTmp+3}, 1, v{vTmp+3}\nv_xor_b32 v{vTmp+2}, v{vTmp+2}, v{vTmp+3}\nv_lshlrev_b32 v{vTmp+2}, 4, v{vTmp+2}")
a(f"v_bfe_u32 v{vTmp+3}, v0, 2, 2\nv_lshl_add_u32 v{vTmp+3}, v{vTmp+1}, 3, v{vTmp+3}\nv_lshl_add_u32 v{vTr}, v{vTmp+3}, 7, v{vTmp+2}")
a(f"v_xor_b32 v{vTr+1}, 16, v{vTr}\nv_xor_b32 v{vTr+2}, 64, v{vTr}\nv_add_u32 v{vTr+2}, 512, v{vTr+2}\nv_xor_b32 v{vTr+3}, 16, v{vTr+2}")
a(f"s_lshl_b32 s{sT}, s{sGrp}, 4\nv_mov_b32 v{vH+1}, s{sT}")
a(f"L_hinit:\nglobal_load_dword v{vH}, v{vH+1}, s[16:17] sc1\ns_waitcnt vmcnt(0)\nv_readfirstlane_b32 s{sT}, v{vH}\ns_cmp_ge_u32 s{sT}, 16\ns_cbranch_scc1 L_hinit_ok\ns_sleep 8\n{CAP}\ns_branch L_hinit\nL_hinit_ok:")
a(f"s_lshl_b32 s{sT}, s{sGrp}, 15\ns_add_u32 s{sT}, s{sT}, {PS_OFF}\ns_add_u32 s24, s18, s{sT}\ns_addc_u32 s25, s19, 0\ns_mov_b32 s26, 32768\ns_mov_b32 s27, 0x20000")
a(f"s_mov_b32 s{sSet}, 0\ns_mov_b32 s{sIdx}, {A.trigA}")
a(f"v_lshlrev_b32 v{vPw}, 3, v0\nv_add_u32 v{vPw}, {L_P}, v{vPw}")
a(f"v_and_b32 v{vPr}, 3, v0\nv_lshlrev_b32 v{vPr}, 7, v{vPr}\nv_lshl_add_u32 v{vPr}, v{vTmp+1}, 4, v{vPr}\nv_add_u32 v{vPr}, {L_P}, v{vPr}")
a(f"v_and_b32 v{vWw}, 3, v0\nv_lshlrev_b32 v{vWw}, 8, v{vWw}\nv_lshl_add_u32 v{vWw}, v{vTmp+1}, 6, v{vWw}")
a(f"s_mov_b32 s{sM}, 0x000f000f\ns_mov_b32 s{sM+1}, 0x000f000f")
def wcompute():
    for nt in range(4):
        for kt in range(2):
            for h in range(2):
                r=vA+8*nt+4*kt+2*h
                a(f"ds_read_b64_tr_b16 v[{r}:{r+1}], v{vTc+2*h+(nt>>1)} offset:{kt*4096+(nt&1)*8}")
    for nt in range(4):
        a(f"s_waitcnt lgkmcnt({12-4*nt})")
        c=vW+4*nt; r=vA+8*nt
        a(f"v_mfma_f32_16x16x32_bf16 v[{c}:{c+3}], v[{r}:{r+3}], v[{vP}:{vP+3}], 0")
        a(f"v_mfma_f32_16x16x32_bf16 v[{c}:{c+3}], v[{r+4}:{r+7}], v[{vP+4}:{vP+7}], v[{c}:{c+3}]")
    a(f"s_nop 7\ns_mov_b64 exec, s[{sM}:{sM+1}]")
    for nt in range(4): a(f"ds_write_b128 v{vWc}, v[{vW+4*nt}:{vW+4*nt+3}] offset:{nt*16}")
    a("s_mov_b64 exec, -1\ns_waitcnt lgkmcnt(0)")
a("L_hset:")
prog_wait_ge(f"s{sIdx}",vH,8)
a(f"s_lshl_b32 s{sK1}, s{sSet}, 14")
a("L_hpoll:")
for m in range(16):
    if m%4==0: a(f"s_add_u32 s{sT+1}, s{sK1}, {m*1024}")
    if not A.nogather: a(f"buffer_load_dwordx4 v[{vL+4*m}:{vL+4*m+3}], v{vLo}, s[24:27], s{sT+1} offen offset:{(m%4)*1024} sc1")
    else:
        for x in range(4): a(f"v_mov_b32 v{vL+4*m+x}, 0")
a("s_waitcnt vmcnt(0)")
a(f"v_max3_u32 v{vH}, v{vL}, v{vL+1}, v{vL+2}")
for x in range(3,63,2): a(f"v_max3_u32 v{vH}, v{vH}, v{vL+x}, v{vL+x+1}")
a(f"v_max_u32 v{vH}, v{vH}, v{vL+63}\nv_cmp_eq_u32 vcc, {SENT}, v{vH}\ns_nop 4\ns_cbranch_vccz L_hgot\ns_sleep 16\n{CAP}\ns_branch L_hpoll\nL_hgot:")
for m in range(1,16):
    for x in range(4): a(f"v_add_f32 v{vL+x}, v{vL+x}, v{vL+4*m+x}")
X=vL; T=vH
for x in range(4):
    a(f"v_cvt_pk_bf16_f32 v{X+x}, v{X+x}, v{X+x}\nv_and_b32 v{X+x}, 0xffff0000, v{X+x}\nv_mul_f32 v{X+x}, 0x3db504f3, v{X+x}")
    a(f"v_cvt_pk_bf16_f32 v{X+x}, v{X+x}, v{X+x}\nv_and_b32 v{X+x}, 0xffff0000, v{X+x}")
a(f"v_max3_f32 v{T}, v{X}, v{X+1}, v{X+2}\nv_max_f32 v{T}, v{T}, v{X+3}")
for sh in (8,4,2,1): a(f"s_nop 1\nv_max_f32_dpp v{T}, v{T}, v{T} row_ror:{sh} row_mask:0xf bank_mask:0xf")
for x in range(4): a(f"v_sub_f32 v{X+x}, v{X+x}, v{T}\nv_mul_f32 v{X+x}, 0x3fb8aa3b, v{X+x}\nv_exp_f32 v{X+x}, v{X+x}")
a(f"s_nop 0\nv_add_f32 v{T}, v{X}, v{X+1}\nv_add_f32 v{T+1}, v{X+2}, v{X+3}\nv_add_f32 v{T}, v{T}, v{T+1}")
for sh in (8,4,2,1): a(f"s_nop 1\nv_add_f32_dpp v{T}, v{T}, v{T} row_ror:{sh} row_mask:0xf bank_mask:0xf")
a(f"v_rcp_f32 v{T}, v{T}\ns_nop 0")
for x in range(4): a(f"v_mul_f32 v{X+x}, v{X+x}, v{T}")
a(f"v_cvt_pk_bf16_f32 v{T+2}, v{X}, v{X+1}\nv_cvt_pk_bf16_f32 v{T+3}, v{X+2}, v{X+3}\nds_write_b64 v{vPw}, v[{T+2}:{T+3}]\ns_waitcnt lgkmcnt(0)")
a(f"ds_read_b128 v[{vP}:{vP+3}], v{vPr}\nds_read_b128 v[{vP+4}:{vP+7}], v{vPr} offset:64\ns_waitcnt lgkmcnt(0)")
for x in range(4): a(f"v_add_u32 v{vTc+x}, {L_F}, v{vTr+x}")
a(f"s_lshl_b32 s{sT}, s{sSet}, 13\ns_add_u32 s{sT}, s{sT}, {L_W}\nv_add_u32 v{vWc}, s{sT}, v{vWw}")
a(f"s_cmp_eq_u32 s{sSet}, 0\ns_cselect_b32 s{sK}, 8, {S}")
a("L_hw:")
wcompute()
for x in range(4): a(f"v_add_u32 v{vTc+x}, 8192, v{vTc+x}")
a(f"v_add_u32 v{vWc}, 1024, v{vWc}")
a(f"s_sub_u32 s{sK}, s{sK}, 1\ns_cmp_lg_u32 s{sK}, 0\ns_cbranch_scc1 L_hw")
a(f"s_add_u32 s{sSet}, s{sSet}, 1\nv_mov_b32 v{vH}, s{sSet}\nds_write_b32 v{vFl}, v{vH} offset:{F_WR}")
a(f"s_mov_b32 s{sIdx}, {A.trigB}\ns_cmp_lt_u32 s{sSet}, 2\ns_cbranch_scc1 L_hset")
a(f"s_mov_b32 s{sIdx}, {J0}")
a("L_hp:")
a(f"s_sub_u32 s{sK1}, s{sIdx}, {LA}")
prog_wait_ge(f"s{sK1}",vH,1)
a(f"s_mov_b64 exec, 1\nglobal_atomic_add v{vTk}, v{vZ}, v{vOne}, s[28:29] sc0 {A.apol}\ns_mov_b64 exec, -1")
a(f"s_cmp_eq_u32 s{sIdx}, {J0}\ns_cbranch_scc1 L_hp2")
a(f"s_sub_u32 s{sK1}, s{sIdx}, 1\ns_and_b32 s{sT+1}, s{sK1}, 3\ns_lshl_b32 s{sT+2}, s{sT+1}, 13\ns_lshl_b32 s{sT+1}, s{sT+1}, 10\ns_add_u32 s{sT+1}, s{sT+1}, {L_WP}")
for x in range(4): a(f"v_add_u32 v{vTc+x}, s{sT+2}, v{vTr+x}")
a(f"v_add_u32 v{vWc}, s{sT+1}, v{vWw}\ns_waitcnt vmcnt(1)")
wcompute()
a(f"v_mov_b32 v{vH}, s{sK1}\nds_write_b32 v{vFl}, v{vH} offset:{F_WR}")
a("L_hp2:")
a(f"s_waitcnt vmcnt(0)\nv_readfirstlane_b32 s{sK1}, v{vTk}")
a(f"s_lshr_b32 s{sK}, s{sK1}, 4\ns_add_u32 s{sK}, s{sK}, {S}\ns_and_b32 s{sT+2}, s{sK1}, 15")
chunk_id(sOff,sK,sT+2)
a(f"s_cmp_ge_u32 s{sK1}, {NPOOL}\ns_cselect_b32 s{sOff}, {END}, s{sOff}")
a(f"s_lshl_b32 s{sT+1}, s{sIdx}, 16\ns_or_b32 s{sT+1}, s{sT+1}, s{sOff}\ns_and_b32 s{sT+2}, s{sIdx}, 3\ns_lshl_b32 s{sT+3}, s{sT+2}, 2")
a(f"v_add_u32 v{vH+1}, s{sT+3}, v{vFl}\nv_mov_b32 v{vH}, s{sT+1}\nds_write_b32 v{vH+1}, v{vH} offset:{F_MB}")
a(f"s_cmp_eq_u32 s{sOff}, {END}\ns_cbranch_scc1 L_hfin")
a(f"s_lshl_b32 s{sT+4}, s{sT+2}, 13")
dma(f"s{sT+4}",A.ppol)
a(f"s_add_u32 s{sIdx}, s{sIdx}, 1\ns_branch L_hp")
a("L_hfin:")
a(f"s_cmp_ge_u32 s{sMem}, 8\ns_cbranch_scc1 L_end")
a(f"s_lshl_b32 s{sT}, s{sGrp}, 3\ns_add_u32 s{sT+2}, s{sT}, s{sMem}\ns_lshl_b32 s{sT}, s{sT+2}, 13\ns_add_u32 s{sT}, s{sT}, {PO_OFF}\ns_add_u32 s24, s18, s{sT}\ns_addc_u32 s25, s19, 0\ns_mov_b32 s26, 8192")
a(f"s_lshl_b32 s{sT+2}, s{sT+2}, 8\ns_add_u32 s14, s14, s{sT+2}\ns_addc_u32 s15, s15, 0\nv_lshlrev_b32 v{vPw}, 3, v0\ns_mov_b32 s{sT+3}, 4096")
prog_wait_ge("0xffff",vH,2)
a("L_fpoll:")
for t in range(8):
    a(f"buffer_load_dwordx4 v[{vL+4*t}:{vL+4*t+3}], v{vLo}, s[24:27], {'0' if t<4 else 's%d'%(sT+3)} offen offset:{(t%4)*1024} sc1")
a("s_waitcnt vmcnt(0)")
a(f"v_max3_u32 v{vH}, v{vL}, v{vL+1}, v{vL+2}")
for x in range(3,31,2): a(f"v_max3_u32 v{vH}, v{vH}, v{vL+x}, v{vL+x+1}")
a(f"v_max_u32 v{vH}, v{vH}, v{vL+31}\nv_cmp_eq_u32 vcc, {SENT}, v{vH}\ns_nop 4\ns_cbranch_vccz L_fgot\ns_sleep {A.fsleep}\n{CAP}\ns_branch L_fpoll\nL_fgot:")
for t in range(1,8):
    for x in range(4): a(f"v_add_f32 v{vL+x}, v{vL+x}, v{vL+4*t+x}")
for x in range(4): a(f"v_mov_b32 v{vL+4+x}, v{vL+x}")
a("s_nop 1")
for x in range(4): a(f"v_permlane32_swap_b32 v{vL+x}, v{vL+4+x}")
for x in range(4): a(f"v_add_f32 v{vL+x}, v{vL+x}, v{vL+4+x}")
a(f"v_cvt_pk_bf16_f32 v{vH}, v{vL}, v{vL+1}\nv_cvt_pk_bf16_f32 v{vH+1}, v{vL+2}, v{vL+3}\ns_mov_b32 exec_hi, 0\nglobal_store_dwordx2 v{vPw}, v[{vH}:{vH+1}], s[14:15]")
if A.diag==1:
    a(f"s_waitcnt vmcnt(0)\ns_memrealtime s[{sTS+2}:{sTS+3}]\ns_lshl_b32 s{sT}, s2, 3\ns_add_u32 s{sT}, s{sT}, 0x10000\ns_waitcnt lgkmcnt(0)\ns_mov_b64 exec, 1\nv_mov_b32 v7, s{sT}\nv_mov_b32 v10, s{sTS+2}\nv_mov_b32 v11, s{sTS+3}\nglobal_store_dwordx2 v7, v[10:11], s[18:19]")
a("L_end:\ns_endpgm")
print(emit(A.out,[(NAME,a.text(),NV+(1 if A.diag else 0),80,None)],[(NAME,256,320,LDS_BYTES)]))
```

```python
import sys, argparse
from common import *
ap=argparse.ArgumentParser()
ap.add_argument("out"); ap.add_argument("--pol",default="nt"); ap.add_argument("--epol",default="")
ap.add_argument("--order",default="cyc"); ap.add_argument("--rot",default="grp"); ap.add_argument("--diag",type=int,default=0)
ap.add_argument("--trigA",type=int,default=12); ap.add_argument("--trigB",type=int,default=20)
ap.add_argument("--fsleep",type=int,default=1); ap.add_argument("--S",type=int,default=3); ap.add_argument("--LA",type=int,default=2)
ap.add_argument("--apol",default="nt"); ap.add_argument("--ppol",default=""); ap.add_argument("--cstride",type=int,default=4352)
ap.add_argument("--nogather",type=int,default=0)
ap.add_argument("--nopub",type=int,default=0); ap.add_argument("--tlb",type=int,default=0); ap.add_argument("--noinit",type=int,default=0); ap.add_argument("--noslab",type=int,default=0)
A=ap.parse_args()
POL=A.pol; EPOL=A.epol; S=A.S; J0=24+S; NPOOL=16*(8-S); LA=A.LA
NAME=KNAME+"_kernel"
PS_OFF=0x100000
PO_OFF=0x200000
CN_OFF=0x300000
L_E=0; L_F=65536; L_W=131072; L_WP=L_W+16384; L_P=L_WP+4096; L_FLAG=L_P+512; LDS_BYTES=L_FLAG+64
F_ER=0; F_WR=4; F_PROG=16; F_MB=32
SENT=-1; END=0xff
vKoff=1; vLr=2; vLa=4; vFl=6; vSt=7
vT=8; vTmp=16; vQ=24; vQB=28; vBh=32; vBl=36; vAcc=40; vFr=56; vBuf=88; vPg=152; NV=153
vTA=24
sWave=3; sMem=32; sGrp=33; sHead=34; sK=40; sK1=41; sOff=42; sSet=43; sIdx=44; sRot=45
sNB=46; sLast=48; sVA=50; sVB=52; sT=54
sM=60; sTS=68; sCap=72
a=Asm()
CAP=f"s_sub_u32 s{sCap}, s{sCap}, 1\ns_cbranch_scc1 L_end"
def chunk_id(dst,k,mem=sMem):
    a(f"s_add_u32 s{dst}, s{k}, s{sRot}\ns_and_b32 s{dst}, s{dst}, 7")
    if A.order=="cyc": a(f"s_lshl_b32 s{dst}, s{dst}, 4\ns_add_u32 s{dst}, s{dst}, s{mem}")
    else: a(f"s_lshl_b32 s{sT+5}, s{mem}, 3\ns_add_u32 s{dst}, s{dst}, s{sT+5}")
def issue_load(j):
    r=vBuf+4*j
    a(f"buffer_load_dwordx4 v[{r}:{r+3}], v{vKoff}, s[20:23], s{sOff} offen offset:{j*256} {POL}")
uid=[0]
def lds_wait_ge(flag,val,tmpv=vTmp,sleep=1):
    uid[0]+=1; L=f"L_w{uid[0]}"
    a(f"{L}:\nds_read_b32 v{tmpv}, v{vFl} offset:{flag}\ns_waitcnt lgkmcnt(0)\nv_readfirstlane_b32 s{sT}, v{tmpv}")
    a(f"s_cmp_ge_u32 s{sT}, {val}\ns_cbranch_scc1 {L}_ok\ns_sleep {sleep}\n{CAP}\ns_branch {L}\n{L}_ok:")
def prog_wait_ge(val,t,sleep):
    uid[0]+=1; L=f"L_w{uid[0]}"
    a(f"{L}:\nds_read_b128 v[{t}:{t+3}], v{vFl} offset:{F_PROG}\ns_waitcnt lgkmcnt(0)\nv_min3_u32 v{t}, v{t}, v{t+1}, v{t+2}\nv_min_u32 v{t}, v{t}, v{t+3}\ns_nop 0\nv_readfirstlane_b32 s{sT}, v{t}")
    a(f"s_cmp_ge_u32 s{sT}, {val}\ns_cbranch_scc1 {L}_ok\ns_sleep {sleep}\n{CAP}\ns_branch {L}\n{L}_ok:")

def stamp(k,once=False):
    if A.diag!=3: return
    uid[0]+=1
    if once: a(f"s_cmp_lg_u32 s{sIdx}, 0\ns_cbranch_scc1 L_st{uid[0]}")
    a(f"s_memrealtime s[{sTS+2}:{sTS+3}]\ns_waitcnt lgkmcnt(0)\nv_writelane_b32 v153, s{sTS+2}, {k}")
    if once: a(f"L_st{uid[0]}:")
def progress():
    if A.diag==3: a(f"s_memrealtime s[{sTS+2}:{sTS+3}]\ns_waitcnt lgkmcnt(0)\ns_add_u32 m0, s{sIdx}, 8\ns_nop 0\nv_writelane_b32 v153, s{sTS+2}, m0")
    if A.diag==1: a(f"s_memrealtime s[{sTS+2}:{sTS+3}]\ns_waitcnt lgkmcnt(0)\ns_mov_b32 m0, s{sIdx}\ns_nop 0\nv_writelane_b32 v153, s{sTS+2}, m0")
    a(f"s_add_u32 s{sIdx}, s{sIdx}, 1\nv_mov_b32 v{vTmp}, s{sIdx}\nds_write_b32 v{vPg}, v{vTmp}")
a(f"s_cmp_ge_u32 s2, 256\ns_cbranch_scc1 L_end")
a("s_load_dwordx4 s[4:7], s[0:1], 0\ns_load_dwordx4 s[8:11], s[0:1], 16\ns_load_dwordx4 s[12:15], s[0:1], 32\ns_load_dwordx4 s[16:19], s[0:1], 48")
if A.diag: a(f"s_memrealtime s[{sTS}:{sTS+1}]")
a(f"v_lshrrev_b32 v1, 6, v0\nv_and_b32 v0, 63, v0\nv_readfirstlane_b32 s{sWave}, v1")
a(f"s_and_b32 s{sMem}, s2, 15\ns_lshr_b32 s{sGrp}, s2, 4")
if A.rot=="none": a(f"s_mov_b32 s{sRot}, 0")
elif A.rot=="grp": a(f"s_mov_b32 s{sRot}, s{sGrp}")
a(f"v_mov_b32 v{vFl}, {L_FLAG}\ns_mov_b32 s{sCap}, 0x10000")
a(f"v_and_b32 v{vTmp}, 15, v0\nv_lshrrev_b32 v{vTmp+1}, 4, v0")
a(f"s_cmp_eq_u32 s{sWave}, 4\ns_cbranch_scc1 L_helper")
a(f"s_lshl_b32 s{sHead}, s{sGrp}, 3\ns_add_u32 s{sHead}, s{sHead}, s{sWave}")
a(f"v_lshlrev_b32 v{vKoff}, 4, v{vTmp}\nv_lshlrev_b32 v{vTmp+2}, 4, v{vTmp}\nv_lshl_add_u32 v{vKoff}, v{vTmp+1}, 12, v{vKoff}")
a(f"s_mov_b32 s{sK}, 0")
chunk_id(sOff,sK); a(f"s_lshl_b32 s{sOff}, s{sOff}, 14")
a(f"s_lshl_b32 s{sT}, s{sHead}, 21\ns_lshl_b32 s{sT+1}, s{sHead}, 8\ns_mov_b32 s22, {2<<20}\ns_mov_b32 s23, 0x20000")
a("s_waitcnt lgkmcnt(0)")
stamp(1)
a(f"s_add_u32 s20, s6, s{sT}\ns_addc_u32 s21, s7, 0\ns_add_u32 s4, s4, s{sT+1}\ns_addc_u32 s5, s5, 0")
a(f"global_load_dwordx4 v[{vQ}:{vQ+3}], v{vTmp+2}, s[4:5]")
for j in range(16): issue_load(j)
a(f"global_load_dwordx4 v[{vQB}:{vQB+3}], v{vTmp+2}, s[4:5] offset:1024")
stamp(2)
a(f"s_add_u32 s{sNB}, s20, {8<<20}\ns_addc_u32 s{sNB+1}, s21, 0")
a(f"s_add_u32 s{sVA}, s8, s{sT}\ns_addc_u32 s{sVA+1}, s9, 0\ns_add_u32 s{sVB}, s{sVA}, {8<<20}\ns_addc_u32 s{sVB+1}, s{sVA+1}, 0")
a(f"v_bfe_u32 v{vTmp+2}, v0, 1, 1\nv_bfe_u32 v{vTmp+3}, v0, 2, 1\nv_bfe_u32 v{vTmp+4}, v0, 3, 1")
a(f"v_xor_b32 v{vTmp+3}, v{vTmp+3}, v{vTmp+4}\nv_lshl_or_b32 v{vTmp+2}, v{vTmp+4}, 1, v{vTmp+2}\nv_lshl_or_b32 v{vTmp+2}, v{vTmp+3}, 2, v{vTmp+2}")
a(f"v_lshlrev_b32 v{vTmp+3}, 1, v{vTmp+1}\nv_xor_b32 v{vTmp+2}, v{vTmp+2}, v{vTmp+3}\nv_lshlrev_b32 v{vTmp+2}, 4, v{vTmp+2}")
a(f"v_lshl_add_u32 v{vLr}, v{vTmp}, 7, v{vTmp+2}\nv_xor_b32 v{vLr+1}, 16, v{vLr}")
a(f"v_lshlrev_b32 v{vTmp+2}, 4, v{vTmp}\nv_lshl_add_u32 v{vSt}, v{vTmp+1}, 6, v{vTmp+2}")
for x,mk in enumerate((0xAAAAAAAA,0xCCCCCCCC,0x000F000F)):
    a(f"s_mov_b32 s{sM+2*x}, {mk:#x}\ns_mov_b32 s{sM+2*x+1}, {mk:#x}")
a(f"s_lshl_b32 s{sT}, s{sGrp}, 15\ns_lshl_b32 s{sT+1}, s{sMem}, 10\ns_add_u32 s{sT}, s{sT}, s{sT+1}\ns_lshl_b32 s{sT+1}, s{sWave}, 8\ns_add_u32 s{sT}, s{sT}, s{sT+1}\ns_add_u32 s{sT}, s{sT}, {PS_OFF}")
a(f"s_add_u32 s24, s18, s{sT}\ns_addc_u32 s25, s19, 0")
a(f"s_lshl_b32 s{sT}, s{sGrp}, 16\ns_lshl_b32 s{sT+1}, s{sMem}, 9\ns_add_u32 s{sT}, s{sT}, s{sT+1}\ns_lshl_b32 s{sT+1}, s{sWave}, 13\ns_add_u32 s{sT}, s{sT}, s{sT+1}\ns_add_u32 s{sT}, s{sT}, {PO_OFF}")
a(f"s_add_u32 s26, s18, s{sT}\ns_addc_u32 s27, s19, 0")
a(f"s_lshl_b32 s{sT}, s{sWave}, 2\ns_add_u32 s{sT}, s{sT}, {L_FLAG+F_PROG}\nv_mov_b32 v{vPg}, s{sT}")
for x in range(16): a(f"v_mov_b32 v{vAcc+x}, 0")
a(f"s_mov_b32 s{sSet}, 0\ns_mov_b32 s{sIdx}, 0\ns_mov_b32 s{sLast}, 0")
a("s_barrier")
stamp(3)
a("L_kloop:")
a(f"s_add_u32 s{sK1}, s{sK}, 1\ns_and_b32 s{sK1}, s{sK1}, 7\ns_cbranch_scc1 L_ndk\ns_mov_b32 s20, s{sNB}\ns_mov_b32 s21, s{sNB+1}\nL_ndk:")
chunk_id(sOff,sK1); a(f"s_lshl_b32 s{sOff}, s{sOff}, 14")
a(f"s_lshl_b32 s{sT+1}, s{sK}, 13\nv_add_u32 v{vLa}, s{sT+1}, v{vLr}\nv_add_u32 v{vLa+1}, s{sT+1}, v{vLr+1}")
for b in range(2):
    for jj in range(8):
        j=8*b+jj; r=vBuf+4*j
        a("s_waitcnt vmcnt(15)")
        if j==0: stamp(4,True)
        if j==5: stamp(5,True)
        if j==6: stamp(6,True)
        if j==15: stamp(7,True)
        a(f"v_dot2_f32_bf16 v{vT+jj}, v{r}, v{vQ}, 0")
        for x in range(1,4): a(f"v_dot2_f32_bf16 v{vT+jj}, v{r+x}, v{vQ+x}, v{vT+jj}")
        issue_load(j)
        if b==0 and jj==5:
            a(f"s_add_u32 s{sT+1}, s{sK}, 1")
            lds_wait_ge(F_ER,f"s{sT+1}")
            for bb in range(2):
                for rt in range(4):
                    rr=vFr+16*bb+4*rt
                    a(f"ds_read_b128 v[{rr}:{rr+3}], v{vLa+bb} offset:{rt*2048}")
    a("s_nop 2")
    for p in range(4):
        t0=vT+2*p; t1=t0+1
        a(f"v_cvt_pk_bf16_f32 v{vBh+p}, v{t0}, v{t1}")
        a(f"v_lshlrev_b32 v{vTmp}, 16, v{vBh+p}\nv_and_b32 v{vTmp+1}, 0xffff0000, v{vBh+p}")
        a(f"v_sub_f32 v{vTmp}, v{t0}, v{vTmp}\nv_sub_f32 v{vTmp+1}, v{t1}, v{vTmp+1}")
        a(f"v_cvt_pk_bf16_f32 v{vBl+p}, v{vTmp}, v{vTmp+1}")
    a("s_waitcnt lgkmcnt(0)\ns_nop 0" if b==0 else "s_nop 1")
    for B in (vBh,vBl):
        for rt in range(4):
            r=vFr+16*b+4*rt; c=vAcc+4*rt
            a(f"v_mfma_f32_16x16x32_bf16 v[{c}:{c+3}], v[{r}:{r+3}], v[{B}:{B+3}], v[{c}:{c+3}]")
progress()
a(f"s_mov_b32 s{sK}, s{sK1}\ns_cmp_lg_u32 s{sK}, 0\ns_cbranch_scc1 L_kloop")
a("s_nop 7")
for sh in (8,4,2,1):
    for x in range(16): a(f"v_add_f32_dpp v{vAcc+x}, v{vAcc+x}, v{vAcc+x} row_ror:{sh} row_mask:0xf bank_mask:0xf")
for x in range(4):
    a(f"v_cndmask_b32 v{vAcc+x}, v{vAcc+x}, v{vAcc+4+x}, s[{sM}:{sM+1}]\nv_cndmask_b32 v{vAcc+8+x}, v{vAcc+8+x}, v{vAcc+12+x}, s[{sM}:{sM+1}]")
for x in range(4): a(f"v_cndmask_b32 v{vAcc+x}, v{vAcc+x}, v{vAcc+8+x}, s[{sM+2}:{sM+3}]")
a(f"v_mov_b32 v{vTmp+4}, 0x7fc00000")
for x in range(4): a(f"v_cmp_eq_u32 vcc, {SENT}, v{vAcc+x}\ns_nop 1\nv_cndmask_b32 v{vTmp+x}, v{vAcc+x}, v{vTmp+4}, vcc")
if not A.nopub: a(f"s_mov_b64 exec, s[{sM+4}:{sM+5}]\nglobal_store_dwordx4 v{vSt}, v[{vTmp}:{vTmp+3}], s[24:25] sc1\ns_mov_b64 exec, -1")
for x in range(16): a(f"v_mov_b32 v{vAcc+x}, 0")
for x in range(4): a(f"v_mov_b32 v{vQ+x}, v{vQB+x}")
a(f"s_add_u32 s24, s24, 16384\ns_addc_u32 s25, s25, 0\ns_mov_b32 s{sNB}, s{sVA}\ns_mov_b32 s{sNB+1}, s{sVA+1}")
a(f"s_add_u32 s{sSet}, s{sSet}, 1\ns_cmp_lt_u32 s{sSet}, 2\ns_cbranch_scc1 L_kloop")
a(f"s_lshl_b32 s{sT}, s{sWave}, 8\ns_add_u32 s{sT}, s{sT}, {L_W}\nv_lshrrev_b32 v{vTmp+1}, 4, v0\nv_lshl_add_u32 v{vLr}, v{vTmp+1}, 6, s{sT}\nv_add_u32 v{vLr+1}, {L_WP-L_W}, v{vLr}")
a(f"v_and_b32 v{vTmp}, 15, v0\nv_lshlrev_b32 v{vTmp}, 5, v{vTmp}\nv_and_b32 v{vSt}, 16, v0\nv_add_u32 v{vSt}, v{vSt}, v{vTmp}\nv_lshrrev_b32 v{vTmp}, 5, v0\nv_lshl_add_u32 v{vSt}, v{vTmp}, 15, v{vSt}")
for x in range(8): a(f"v_mov_b32 v{vT+x}, 0")
lds_wait_ge(F_WR,1)
a("L_vloop:")
a(f"s_cmp_ge_u32 s{sIdx}, {J0}\ns_cbranch_scc1 L_vpool")
a(f"v_mov_b32 v{vLa}, v{vLr}\nv_add_u32 v{vLr}, 1024, v{vLr}")
a(f"s_cmp_lg_u32 s{sIdx}, 24\ns_cbranch_scc1 L_vw")
for x in range(8): a(f"v_mov_b32 v{vTA+x}, v{vT+x}\nv_mov_b32 v{vT+x}, 0")
lds_wait_ge(F_WR,2)
a("s_branch L_vw\nL_vpool:")
a(f"s_and_b32 s{sT+1}, s{sIdx}, 3\ns_lshl_b32 s{sT+1}, s{sT+1}, 10\nv_add_u32 v{vLa}, s{sT+1}, v{vLr+1}")
lds_wait_ge(F_WR,f"s{sIdx}")
a("L_vw:")
for x in range(4): a(f"ds_read_b128 v[{vAcc+4*x}:{vAcc+4*x+3}], v{vLa} offset:{16*x}")
a(f"s_add_u32 s{sK1}, s{sIdx}, 1\ns_cmp_ge_u32 s{sK1}, {J0}\ns_cbranch_scc1 L_vmb")
a(f"s_and_b32 s{sK1}, s{sK1}, 7\ns_cbranch_scc1 L_ndv\ns_mov_b32 s20, s{sVB}\ns_mov_b32 s21, s{sVB+1}\nL_ndv:")
chunk_id(sOff,sK1)
a("s_branch L_vgo\nL_vmb:")
a(f"s_and_b32 s{sT+1}, s{sK1}, 3\ns_lshl_b32 s{sT+1}, s{sT+1}, 2\nv_add_u32 v{vLa+1}, s{sT+1}, v{vFl}")
a(f"L_vmbp:\nds_read_b32 v{vTmp}, v{vLa+1} offset:{F_MB}\ns_waitcnt lgkmcnt(0)\nv_readfirstlane_b32 s{sOff}, v{vTmp}\ns_lshr_b32 s{sT}, s{sOff}, 16\ns_cmp_eq_u32 s{sT}, s{sK1}\ns_cbranch_scc1 L_vmbok\ns_sleep 1\n{CAP}\ns_branch L_vmbp\nL_vmbok:")
a(f"s_and_b32 s{sOff}, s{sOff}, 0xff\ns_cmp_eq_u32 s{sOff}, {END}\ns_cselect_b32 s22, 0, s22\ns_cselect_b32 s{sLast}, 1, 0")
a(f"L_vgo:\ns_lshl_b32 s{sOff}, s{sOff}, 14")
for j in range(16):
    r=vBuf+4*j; w=vAcc+j
    a("s_waitcnt vmcnt(15)" + (f" lgkmcnt({3-j//4})" if j%4==0 else ""))
    for x in range(4):
        a(f"v_lshlrev_b32 v{vTmp+2*x}, 16, v{r+x}\nv_and_b32 v{vTmp+2*x+1}, 0xffff0000, v{r+x}")
    issue_load(j)
    for x in range(8): a(f"v_fmac_f32 v{vT+x}, v{w}, v{vTmp+x}")
progress()
a(f"s_cmp_eq_u32 s{sLast}, 0\ns_cbranch_scc1 L_vloop")
for x in range(4): a(f"v_permlane16_swap_b32 v{vTA+x}, v{vTA+4+x}")
for x in range(4): a(f"v_permlane16_swap_b32 v{vT+x}, v{vT+4+x}")
for x in range(4): a(f"v_add_f32 v{vTA+x}, v{vTA+x}, v{vTA+4+x}")
for x in range(4): a(f"v_add_f32 v{vT+x}, v{vT+x}, v{vT+4+x}")
a(f"v_mov_b32 v{vTmp+4}, 0x7fc00000\ns_nop 0")
for x in range(4): a(f"v_permlane32_swap_b32 v{vTA+x}, v{vT+x}")
for x in range(4): a(f"v_add_f32 v{vT+x}, v{vT+x}, v{vTA+x}")
for x in range(4): a(f"v_cmp_eq_u32 s[{sT+2*(x&1)}:{sT+2*(x&1)+1}], {SENT}, v{vT+x}\ns_nop 1\nv_cndmask_b32 v{vBh+x}, v{vT+x}, v{vTmp+4}, s[{sT+2*(x&1)}:{sT+2*(x&1)+1}]")
a(f"global_store_dwordx4 v{vSt}, v[{vBh}:{vBh+3}], s[26:27] sc1")
a(f"v_mov_b32 v{vTmp}, 0xffff\nds_write_b32 v{vPg}, v{vTmp}")
if A.diag in (1,3):
    a(f"s_memrealtime s[{sTS+2}:{sTS+3}]\ns_lshl_b32 s{sT}, s2, 2\ns_add_u32 s{sT}, s{sT}, s{sWave}\ns_lshl_b32 s{sT}, s{sT}, 5\ns_getreg_b32 s{sT+1}, hwreg(HW_REG_XCC_ID)\ns_waitcnt lgkmcnt(0)")
    a(f"v_mov_b32 v8, s{sTS}\nv_mov_b32 v9, s{sTS+1}\nv_mov_b32 v10, s{sTS+2}\nv_mov_b32 v11, s{sTS+3}\nv_mov_b32 v12, s{sT+1}\nv_mov_b32 v13, s{sIdx}\nv_mov_b32 v14, 0\nv_mov_b32 v15, 0\nv_mov_b32 v7, s{sT}")
    a(f"s_lshl_b32 s{sT}, s{sT}, 3\ns_add_u32 s{sT}, s{sT}, 0x1000000\nv_lshl_add_u32 v16, v0, 2, s{sT}\nglobal_store_dword v16, v153, s[18:19]")
    a("s_mov_b64 exec, 1\nglobal_store_dwordx4 v7, v[8:11], s[18:19]\nglobal_store_dwordx4 v7, v[12:15], s[18:19] offset:16")
a("s_endpgm")
a("L_helper:")
vE0=1; vE1=2; vLo=3; vPw=4; vPr=5; vWw=7; vTr=8; vH=12; vP=24; vW=32; vA=48; vL=80; vTc=144; vWc=148; vTk=149; vZ=150; vOne=151
for x in range(4): a(f"v_mov_b32 v{vH+x}, 0\nv_mov_b32 v{vW+x}, {SENT}")
a(f"ds_write_b128 v{vFl}, v[{vH}:{vH+3}]\nds_write_b128 v{vFl}, v[{vH}:{vH+3}] offset:16\nds_write_b128 v{vFl}, v[{vH}:{vH+3}] offset:32")
a(f"v_bfe_u32 v{vTmp+2}, v0, 4, 1\nv_bfe_u32 v{vTmp+3}, v0, 5, 1\nv_and_b32 v{vTmp+4}, 7, v0\nv_lshrrev_b32 v{vTmp+5}, 3, v0\nv_lshlrev_b32 v{vTmp+5}, 14, v{vTmp+5}")
a(f"v_lshl_or_b32 v{vTmp+6}, v{vTmp+3}, 2, v{vTmp+2}\nv_xor_b32 v{vTmp+6}, v{vTmp+6}, v{vTmp+4}")
a(f"v_lshl_add_u32 v{vE0}, v{vTmp+6}, 4, v{vTmp+5}")
a(f"v_xor_b32 v{vTmp+6}, 6, v{vTmp+6}\nv_lshl_add_u32 v{vE1}, v{vTmp+6}, 4, v{vTmp+5}\nv_add_u32 v{vE1}, {8*16384}, v{vE1}")
a(f"v_lshlrev_b32 v{vLo}, 4, v0\nv_add_u32 v{vA}, 16384, v{vLo}")
a(f"v_and_b32 v{vA+1}, 31, v0\nv_lshlrev_b32 v{vA+1}, 4, v{vA+1}\nv_lshrrev_b32 v{vA+2}, 5, v0\nv_lshl_add_u32 v{vA+1}, v{vA+2}, 13, v{vA+1}")
for x in range(1,4): a(f"v_add_u32 v{vA+1+x}, {x*16384}, v{vA+1}")
a(f"v_mov_b32 v{vZ}, 0\nv_mov_b32 v{vOne}, 1")
a(f"s_lshl_b32 s{sT}, s{sGrp}, 15\ns_lshl_b32 s{sT+1}, s{sMem}, 10\ns_add_u32 s{sT}, s{sT}, s{sT+1}\ns_add_u32 s{sT}, s{sT}, {PS_OFF}")
a(f"s_lshl_b32 s{sT+2}, s{sGrp}, 16\ns_lshl_b32 s{sT+1}, s{sMem}, 9\ns_add_u32 s{sT+2}, s{sT+2}, s{sT+1}\ns_add_u32 s{sT+2}, s{sT+2}, {PO_OFF}")
a(f"s_mul_i32 s{sT+3}, s{sGrp}, {A.cstride}\ns_add_u32 s{sT+3}, s{sT+3}, {CN_OFF}")
a(f"s_mov_b32 s22, {1<<20}\ns_mov_b32 s23, 0x20000\ns_waitcnt lgkmcnt(0)\ns_mov_b32 s20, s10\ns_mov_b32 s21, s11")
a(f"s_add_u32 s24, s18, s{sT}\ns_addc_u32 s25, s19, 0\ns_add_u32 s26, s18, s{sT+2}\ns_addc_u32 s27, s19, 0\ns_add_u32 s28, s18, s{sT+3}\ns_addc_u32 s29, s19, 0")
def dma(ldsbase,pol):
    a(f"s_lshl_b32 s{sOff}, s{sOff}, 7")
    for rg in range(4):
        for e in range(2):
            if isinstance(ldsbase,int): a(f"s_mov_b32 m0, {ldsbase+rg*2048+e*1024}")
            else: a(f"s_add_u32 m0, {ldsbase}, {rg*2048+e*1024}")
            a(f"s_add_u32 s{sT}, s{sOff}, {rg*16*16384}")
            a(f"buffer_load_dwordx4 v{vE0+e}, s[20:23], s{sT} offen {pol} lds")
def dma_chunk(k,base):
    if A.noslab: return
    a(f"s_mov_b32 s{sK}, {k}"); chunk_id(sOff,sK); dma(base+k*8192,EPOL)
def setflag(flag,val):
    a(f"v_mov_b32 v{vH}, {val}\nds_write_b32 v{vFl}, v{vH} offset:{flag}")
dma_chunk(0,L_E)
if not A.noinit: a(f"global_store_dwordx4 v{vLo}, v[{vW}:{vW+3}], s[24:25] sc1\nglobal_store_dwordx4 v{vA}, v[{vW}:{vW+3}], s[24:25] sc1")
for x in range(0 if A.noinit else 4): a(f"global_store_dwordx4 v{vA+1+x}, v[{vW}:{vW+3}], s[26:27] sc1")
a(f"s_cmp_eq_u32 s{sMem}, 0\ns_cbranch_scc0 L_hnz\ns_mov_b64 exec, 1\nglobal_store_dword v{vZ}, v{vZ}, s[28:29] sc1\ns_mov_b64 exec, -1\nL_hnz:")
dma_chunk(1,L_E)
a("s_barrier")
a("s_waitcnt vmcnt(%d)"%(8 if A.noinit else 14)); setflag(F_ER,1)
dma_chunk(2,L_E)
a("s_waitcnt vmcnt(8)"); setflag(F_ER,2)
a(f"s_lshl_b32 s{sT}, s{sGrp}, 4\nv_mov_b32 v{vH+1}, s{sT}\ns_mov_b64 exec, 1\nglobal_atomic_add v{vH+1}, v{vOne}, s[16:17]\ns_mov_b64 exec, -1")
for k in range(3,8):
    dma_chunk(k,L_E)
    a("s_waitcnt vmcnt(8)"); setflag(F_ER,k)
if A.tlb:
    a(f"s_mov_b32 s{sK}, 0"); chunk_id(sOff,sK)
    a(f"s_lshl_b32 s{sOff}, s{sOff}, 14\ns_lshl_b32 s{sT}, s{sGrp}, 24\ns_add_u32 s{sT}, s{sT}, s{sOff}\nv_lshlrev_b32 v{vH+2}, 21, v0\nv_add_u32 v{vH+2}, s{sT}, v{vH+2}")
    a(f"s_mov_b64 exec, 0xff\nglobal_load_dword v{vH+3}, v{vH+2}, s[8:9] nt\ns_mov_b64 exec, 0xf0\nglobal_load_dword v{vH+3}, v{vH+2}, s[6:7] nt\ns_mov_b64 exec, -1\ns_waitcnt vmcnt(2)")
a("s_mov_b32 s20, s12\ns_mov_b32 s21, s13")
dma_chunk(0,L_F)
a("s_waitcnt vmcnt(8)"); setflag(F_ER,8)
for k in range(1,8):
    dma_chunk(k,L_F); a("s_waitcnt vmcnt(8)")
a(f"v_bfe_u32 v{vTmp+2}, v0, 3, 1\nv_bfe_u32 v{vTmp+3}, v0, 4, 1\nv_mul_u32_u24 v{vTmp+3}, 6, v{vTmp+3}\nv_or_b32 v{vTmp+2}, v{vTmp+2}, v{vTmp+3}")
a(f"v_and_b32 v{vTmp+3}, 3, v0\nv_lshlrev_b32 v{vTmp+3}, 1, v{vTmp+3}\nv_xor_b32 v{vTmp+2}, v{vTmp+2}, v{vTmp+3}\nv_lshlrev_b32 v{vTmp+2}, 4, v{vTmp+2}")
a(f"v_bfe_u32 v{vTmp+3}, v0, 2, 2\nv_lshl_add_u32 v{vTmp+3}, v{vTmp+1}, 3, v{vTmp+3}\nv_lshl_add_u32 v{vTr}, v{vTmp+3}, 7, v{vTmp+2}")
a(f"v_xor_b32 v{vTr+1}, 16, v{vTr}\nv_xor_b32 v{vTr+2}, 64, v{vTr}\nv_add_u32 v{vTr+2}, 512, v{vTr+2}\nv_xor_b32 v{vTr+3}, 16, v{vTr+2}")
a(f"s_lshl_b32 s{sT}, s{sGrp}, 4\nv_mov_b32 v{vH+1}, s{sT}")
a(f"L_hinit:\nglobal_load_dword v{vH}, v{vH+1}, s[16:17] sc1\ns_waitcnt vmcnt(0)\nv_readfirstlane_b32 s{sT}, v{vH}\ns_cmp_ge_u32 s{sT}, 16\ns_cbranch_scc1 L_hinit_ok\ns_sleep 8\n{CAP}\ns_branch L_hinit\nL_hinit_ok:")
a(f"s_lshl_b32 s{sT}, s{sGrp}, 15\ns_add_u32 s{sT}, s{sT}, {PS_OFF}\ns_add_u32 s24, s18, s{sT}\ns_addc_u32 s25, s19, 0\ns_mov_b32 s26, 32768\ns_mov_b32 s27, 0x20000")
a(f"s_mov_b32 s{sSet}, 0\ns_mov_b32 s{sIdx}, {A.trigA}")
a(f"v_and_b32 v{vPw}, 3, v0\nv_lshlrev_b32 v{vPw}, 5, v{vPw}\nv_bfe_u32 v{vPr}, v0, 2, 2\nv_lshl_add_u32 v{vPw}, v{vPr}, 3, v{vPw}\nv_lshl_add_u32 v{vPw}, v{vTmp+1}, 7, v{vPw}\nv_add_u32 v{vPw}, {L_P}, v{vPw}")
a(f"v_and_b32 v{vPr}, 3, v0\nv_lshlrev_b32 v{vPr}, 7, v{vPr}\nv_lshl_add_u32 v{vPr}, v{vTmp+1}, 4, v{vPr}\nv_add_u32 v{vPr}, {L_P}, v{vPr}")
a(f"v_and_b32 v{vWw}, 3, v0\nv_lshlrev_b32 v{vWw}, 8, v{vWw}\nv_lshl_add_u32 v{vWw}, v{vTmp+1}, 6, v{vWw}")
a(f"s_mov_b32 s{sM}, 0x000f000f\ns_mov_b32 s{sM+1}, 0x000f000f")
def wcompute():
    for nt in range(4):
        for kt in range(2):
            for h in range(2):
                r=vA+8*nt+4*kt+2*h
                a(f"ds_read_b64_tr_b16 v[{r}:{r+1}], v{vTc+2*h+(nt>>1)} offset:{kt*4096+(nt&1)*8}")
    for nt in range(4):
        a(f"s_waitcnt lgkmcnt({12-4*nt})")
        c=vW+4*nt; r=vA+8*nt
        a(f"v_mfma_f32_16x16x32_bf16 v[{c}:{c+3}], v[{r}:{r+3}], v[{vP}:{vP+3}], 0")
        a(f"v_mfma_f32_16x16x32_bf16 v[{c}:{c+3}], v[{r+4}:{r+7}], v[{vP+4}:{vP+7}], v[{c}:{c+3}]")
    a(f"s_nop 7\ns_mov_b64 exec, s[{sM}:{sM+1}]")
    for nt in range(4): a(f"ds_write_b128 v{vWc}, v[{vW+4*nt}:{vW+4*nt+3}] offset:{nt*16}")
    a("s_mov_b64 exec, -1\ns_waitcnt lgkmcnt(0)")
a("L_hset:")
prog_wait_ge(f"s{sIdx}",vH,8)
a(f"s_lshl_b32 s{sK1}, s{sSet}, 14")
a("L_hpoll:")
for m in range(16):
    if m%4==0: a(f"s_add_u32 s{sT+1}, s{sK1}, {m*1024}")
    if not A.nogather: a(f"buffer_load_dwordx4 v[{vL+4*m}:{vL+4*m+3}], v{vLo}, s[24:27], s{sT+1} offen offset:{(m%4)*1024} sc1")
    else:
        for x in range(4): a(f"v_mov_b32 v{vL+4*m+x}, 0")
a("s_waitcnt vmcnt(0)")
a(f"v_max3_u32 v{vH}, v{vL}, v{vL+1}, v{vL+2}")
for x in range(3,63,2): a(f"v_max3_u32 v{vH}, v{vH}, v{vL+x}, v{vL+x+1}")
a(f"v_max_u32 v{vH}, v{vH}, v{vL+63}\nv_cmp_eq_u32 vcc, {SENT}, v{vH}\ns_nop 4\ns_cbranch_vccz L_hgot\ns_sleep 16\n{CAP}\ns_branch L_hpoll\nL_hgot:")
for m in range(1,16):
    for x in range(4): a(f"v_add_f32 v{vL+x}, v{vL+x}, v{vL+4*m+x}")
X=vL; T=vH
for x in range(4):
    a(f"v_cvt_pk_bf16_f32 v{X+x}, v{X+x}, v{X+x}\nv_and_b32 v{X+x}, 0xffff0000, v{X+x}\nv_mul_f32 v{X+x}, 0x3db504f3, v{X+x}")
    a(f"v_cvt_pk_bf16_f32 v{X+x}, v{X+x}, v{X+x}\nv_and_b32 v{X+x}, 0xffff0000, v{X+x}")
a(f"v_max3_f32 v{T}, v{X}, v{X+1}, v{X+2}\nv_max_f32 v{T}, v{T}, v{X+3}")
for sh in (8,4,2,1): a(f"s_nop 1\nv_max_f32_dpp v{T}, v{T}, v{T} row_ror:{sh} row_mask:0xf bank_mask:0xf")
for x in range(4): a(f"v_sub_f32 v{X+x}, v{X+x}, v{T}\nv_mul_f32 v{X+x}, 0x3fb8aa3b, v{X+x}\nv_exp_f32 v{X+x}, v{X+x}")
a(f"s_nop 0\nv_add_f32 v{T}, v{X}, v{X+1}\nv_add_f32 v{T+1}, v{X+2}, v{X+3}\nv_add_f32 v{T}, v{T}, v{T+1}")
for sh in (8,4,2,1): a(f"s_nop 1\nv_add_f32_dpp v{T}, v{T}, v{T} row_ror:{sh} row_mask:0xf bank_mask:0xf")
a(f"v_rcp_f32 v{T}, v{T}\ns_nop 0")
for x in range(4): a(f"v_mul_f32 v{X+x}, v{X+x}, v{T}")
a(f"v_cvt_pk_bf16_f32 v{T+2}, v{X}, v{X+1}\nv_cvt_pk_bf16_f32 v{T+3}, v{X+2}, v{X+3}\nds_write_b64 v{vPw}, v[{T+2}:{T+3}]\ns_waitcnt lgkmcnt(0)")
a(f"ds_read_b128 v[{vP}:{vP+3}], v{vPr}\nds_read_b128 v[{vP+4}:{vP+7}], v{vPr} offset:64\ns_waitcnt lgkmcnt(0)")
for x in range(4): a(f"v_add_u32 v{vTc+x}, {L_F}, v{vTr+x}")
a(f"s_lshl_b32 s{sT}, s{sSet}, 13\ns_add_u32 s{sT}, s{sT}, {L_W}\nv_add_u32 v{vWc}, s{sT}, v{vWw}")
a(f"s_cmp_eq_u32 s{sSet}, 0\ns_cselect_b32 s{sK}, 8, {S}")
a("L_hw:")
wcompute()
for x in range(4): a(f"v_add_u32 v{vTc+x}, 8192, v{vTc+x}")
a(f"v_add_u32 v{vWc}, 1024, v{vWc}")
a(f"s_sub_u32 s{sK}, s{sK}, 1\ns_cmp_lg_u32 s{sK}, 0\ns_cbranch_scc1 L_hw")
a(f"s_add_u32 s{sSet}, s{sSet}, 1\nv_mov_b32 v{vH}, s{sSet}\nds_write_b32 v{vFl}, v{vH} offset:{F_WR}")
a(f"s_mov_b32 s{sIdx}, {A.trigB}\ns_cmp_lt_u32 s{sSet}, 2\ns_cbranch_scc1 L_hset")
a(f"s_mov_b32 s{sIdx}, {J0}")
a("L_hp:")
a(f"s_sub_u32 s{sK1}, s{sIdx}, {LA}")
prog_wait_ge(f"s{sK1}",vH,1)
a(f"s_mov_b64 exec, 1\nglobal_atomic_add v{vTk}, v{vZ}, v{vOne}, s[28:29] sc0 {A.apol}\ns_mov_b64 exec, -1")
a(f"s_cmp_eq_u32 s{sIdx}, {J0}\ns_cbranch_scc1 L_hp2")
a(f"s_sub_u32 s{sK1}, s{sIdx}, 1\ns_and_b32 s{sT+1}, s{sK1}, 3\ns_lshl_b32 s{sT+2}, s{sT+1}, 13\ns_lshl_b32 s{sT+1}, s{sT+1}, 10\ns_add_u32 s{sT+1}, s{sT+1}, {L_WP}")
for x in range(4): a(f"v_add_u32 v{vTc+x}, s{sT+2}, v{vTr+x}")
a(f"v_add_u32 v{vWc}, s{sT+1}, v{vWw}\ns_waitcnt vmcnt(1)")
wcompute()
a(f"v_mov_b32 v{vH}, s{sK1}\nds_write_b32 v{vFl}, v{vH} offset:{F_WR}")
a("L_hp2:")
a(f"s_waitcnt vmcnt(0)\nv_readfirstlane_b32 s{sK1}, v{vTk}")
a(f"s_lshr_b32 s{sK}, s{sK1}, 4\ns_add_u32 s{sK}, s{sK}, {S}\ns_and_b32 s{sT+2}, s{sK1}, 15")
chunk_id(sOff,sK,sT+2)
a(f"s_cmp_ge_u32 s{sK1}, {NPOOL}\ns_cselect_b32 s{sOff}, {END}, s{sOff}")
a(f"s_lshl_b32 s{sT+1}, s{sIdx}, 16\ns_or_b32 s{sT+1}, s{sT+1}, s{sOff}\ns_and_b32 s{sT+2}, s{sIdx}, 3\ns_lshl_b32 s{sT+3}, s{sT+2}, 2")
a(f"v_add_u32 v{vH+1}, s{sT+3}, v{vFl}\nv_mov_b32 v{vH}, s{sT+1}\nds_write_b32 v{vH+1}, v{vH} offset:{F_MB}")
a(f"s_cmp_eq_u32 s{sOff}, {END}\ns_cbranch_scc1 L_hfin")
a(f"s_lshl_b32 s{sT+4}, s{sT+2}, 13")
dma(f"s{sT+4}",A.ppol)
a(f"s_add_u32 s{sIdx}, s{sIdx}, 1\ns_branch L_hp")
a("L_hfin:")
a(f"s_cmp_ge_u32 s{sMem}, 8\ns_cbranch_scc1 L_end")
a(f"s_lshl_b32 s{sT}, s{sGrp}, 3\ns_add_u32 s{sT+2}, s{sT}, s{sMem}\ns_lshl_b32 s{sT}, s{sT+2}, 13\ns_add_u32 s{sT}, s{sT}, {PO_OFF}\ns_add_u32 s24, s18, s{sT}\ns_addc_u32 s25, s19, 0\ns_mov_b32 s26, 8192")
a(f"s_lshl_b32 s{sT+2}, s{sT+2}, 8\ns_add_u32 s14, s14, s{sT+2}\ns_addc_u32 s15, s15, 0\nv_lshlrev_b32 v{vPw}, 3, v0\ns_mov_b32 s{sT+3}, 4096")
prog_wait_ge("0xffff",vH,2)
a("L_fpoll:")
for t in range(8):
    a(f"buffer_load_dwordx4 v[{vL+4*t}:{vL+4*t+3}], v{vLo}, s[24:27], {'0' if t<4 else 's%d'%(sT+3)} offen offset:{(t%4)*1024} sc1")
a("s_waitcnt vmcnt(0)")
a(f"v_max3_u32 v{vH}, v{vL}, v{vL+1}, v{vL+2}")
for x in range(3,31,2): a(f"v_max3_u32 v{vH}, v{vH}, v{vL+x}, v{vL+x+1}")
a(f"v_max_u32 v{vH}, v{vH}, v{vL+31}\nv_cmp_eq_u32 vcc, {SENT}, v{vH}\ns_nop 4\ns_cbranch_vccz L_fgot\ns_sleep {A.fsleep}\n{CAP}\ns_branch L_fpoll\nL_fgot:")
for t in range(1,8):
    for x in range(4): a(f"v_add_f32 v{vL+x}, v{vL+x}, v{vL+4*t+x}")
for x in range(4): a(f"v_mov_b32 v{vL+4+x}, v{vL+x}")
a("s_nop 1")
for x in range(4): a(f"v_permlane32_swap_b32 v{vL+x}, v{vL+4+x}")
for x in range(4): a(f"v_add_f32 v{vL+x}, v{vL+x}, v{vL+4+x}")
a(f"v_cvt_pk_bf16_f32 v{vH}, v{vL}, v{vL+1}\nv_cvt_pk_bf16_f32 v{vH+1}, v{vL+2}, v{vL+3}\ns_mov_b32 exec_hi, 0\nglobal_store_dwordx2 v{vPw}, v[{vH}:{vH+1}], s[14:15]")
if A.diag in (1,3):
    a(f"s_waitcnt vmcnt(0)\ns_memrealtime s[{sTS+2}:{sTS+3}]\ns_lshl_b32 s{sT}, s2, 3\ns_add_u32 s{sT}, s{sT}, 0x10000\ns_waitcnt lgkmcnt(0)\ns_mov_b64 exec, 1\nv_mov_b32 v7, s{sT}\nv_mov_b32 v10, s{sTS+2}\nv_mov_b32 v11, s{sTS+3}\nglobal_store_dwordx2 v7, v[10:11], s[18:19]")
a("L_end:\ns_endpgm")
print(emit(A.out,[(NAME,a.text(),NV+(1 if A.diag else 0),80,None)],[(NAME,256,320,LDS_BYTES)]))
```

```python
import sys, argparse
from common import *
ap=argparse.ArgumentParser()
ap.add_argument("out"); ap.add_argument("--pol",default="nt"); ap.add_argument("--epol",default="")
ap.add_argument("--rot",default="grp"); ap.add_argument("--diag",type=int,default=0)
ap.add_argument("--trigRA",type=int,default=20); ap.add_argument("--trigRB",type=int,default=35)
ap.add_argument("--trigA",type=int,default=26); ap.add_argument("--trigB",type=int,default=42)
ap.add_argument("--fsleep",type=int,default=1); ap.add_argument("--S",type=int,default=4)
ap.add_argument("--LAH",type=int,default=3)
ap.add_argument("--D",type=int,default=8); ap.add_argument("--ej",type=int,default=11)
ap.add_argument("--apol",default="nt"); ap.add_argument("--ppol",default=""); ap.add_argument("--cstride",type=int,default=4352)
ap.add_argument("--opol",default="sc1"); ap.add_argument("--nopub",type=int,default=0); ap.add_argument("--nopre",type=int,default=0)
ap.add_argument("--qpos",type=int,default=2)
ap.add_argument("--spol",default="sc1"); ap.add_argument("--dpol",default=""); ap.add_argument("--preat",type=int,default=1)
ap.add_argument("--prek",type=int,default=5); ap.add_argument("--rsleep",type=int,default=16)
ap.add_argument("--latin",type=int,default=0)
ap.add_argument("--NH",type=int,default=1); ap.add_argument("--dbl",type=int,default=0)
A=ap.parse_args()
POL=A.pol; EPOL=A.epol; S=A.S; J0=24+S; NFULL=16*(8-S-A.NH); NPOOL=NFULL+32*A.NH; D=A.D; assert D==8 and 3<=A.LAH<=4
NAME=KNAME+"_kernel"
PS_OFF=0x100000
PO_OFF=0x200000
CN_OFF=0x300000
PP_OFF=0x380000
L_E=0; L_F=65536; L_W=131072; L_WP=L_W+16384; L_ST=L_WP+4096; L_P=L_ST+2048; L_FLAG=L_P+512; LDS_BYTES=L_FLAG+64
F_ER=0; F_WR=4; F_PROG=16; F_MB=32
SENT=-1; END=0xff; DONE=0xffff
vKoff=1; vLr=2; vLa=4; vFl=6; vSt=7
vT=8; vTmp=16; vQ=24; vQB=28; vBh=32; vBl=36; vAcc=40; vFr=56; vBuf=88; vPg=152; vTS=153; vSo=154
vT16=156; vOO=172; NV=180
vTA=24
sWave=3; sMem=32; sGrp=33; sHead=34; sK=40; sK1=41; sOff=42; sSet=43; sIdx=44; sRot=45
sNB=46; sLast=48; sOffN=49; sVA=50; sVB=52; sT=54
sM=60; sTS=68; sCap=72; sH=35; sRem=30; sNew=31
CUR=20; NXT=36
a=Asm()
CAP=f"s_sub_u32 s{sCap}, s{sCap}, 1\ns_cbranch_scc1 L_end"
def chunk_id(dst,k,mem=sMem):
    a(f"s_add_u32 s{dst}, s{k}, s{sRot}\ns_and_b32 s{dst}, s{dst}, 7")
    if A.latin:
        a(f"s_mul_i32 s{sT+5}, s{dst}, {A.latin}\ns_add_u32 s{sT+5}, s{sT+5}, s{mem}\ns_and_b32 s{sT+5}, s{sT+5}, 15\ns_lshl_b32 s{dst}, s{dst}, 4\ns_add_u32 s{dst}, s{dst}, s{sT+5}")
    else: a(f"s_lshl_b32 s{dst}, s{dst}, 4\ns_add_u32 s{dst}, s{dst}, s{mem}")
def load(jj,srd,off):
    r=vBuf+4*jj
    a(f"buffer_load_dwordx4 v[{r}:{r+3}], v{vKoff}, s[{srd}:{srd+3}], s{off} offen offset:{jj*256} {POL}")
def issue(j):
    if j+D<16: load(j+D,CUR,sOff)
    else: load(j+D-16,NXT,sOffN)
def rotate():
    if D<16: a(f"s_mov_b32 s{CUR}, s{NXT}\ns_mov_b32 s{CUR+1}, s{NXT+1}\ns_mov_b32 s{sOff}, s{sOffN}")
uid=[0]
def lds_wait_ge(flag,val,tmpv=vTmp,sleep=1):
    uid[0]+=1; L=f"L_w{uid[0]}"
    a(f"{L}:\nds_read_b32 v{tmpv}, v{vFl} offset:{flag}\ns_waitcnt lgkmcnt(0)\nv_readfirstlane_b32 s{sT}, v{tmpv}")
    a(f"s_cmp_ge_u32 s{sT}, {val}\ns_cbranch_scc1 {L}_ok\ns_sleep {sleep}\n{CAP}\ns_branch {L}\n{L}_ok:")
def prog_wait_ge(val,t,sleep):
    uid[0]+=1; L=f"L_w{uid[0]}"
    a(f"{L}:\nds_read_b128 v[{t}:{t+3}], v{vFl} offset:{F_PROG}\ns_waitcnt lgkmcnt(0)\nv_min3_u32 v{t}, v{t}, v{t+1}, v{t+2}\nv_min_u32 v{t}, v{t}, v{t+3}\ns_nop 0\nv_readfirstlane_b32 s{sT}, v{t}")
    a(f"s_cmp_ge_u32 s{sT}, {val}\ns_cbranch_scc1 {L}_ok\ns_sleep {sleep}\n{CAP}\ns_branch {L}\n{L}_ok:")
def stamp(k,once=False):
    if A.diag!=3: return
    uid[0]+=1
    if once: a(f"s_cmp_lg_u32 s{sIdx}, 0\ns_cbranch_scc1 L_st{uid[0]}")
    a(f"s_memrealtime s[{sTS+2}:{sTS+3}]\ns_waitcnt lgkmcnt(0)\nv_writelane_b32 v{vTS}, s{sTS+2}, {k}")
    if once: a(f"L_st{uid[0]}:")
def half_progress(t):
    a(f"s_lshl_b32 s{sT+1}, s{sIdx}, 1\ns_add_u32 s{sT+1}, s{sT+1}, 1\nv_mov_b32 v{t}, s{sT+1}\nds_write_b32 v{vPg}, v{t}")
def progress(t):
    if A.diag==3: a(f"s_memrealtime s[{sTS+2}:{sTS+3}]\ns_waitcnt lgkmcnt(0)\ns_add_u32 m0, s{sIdx}, 8\ns_nop 0\nv_writelane_b32 v{vTS}, s{sTS+2}, m0")
    if A.diag==1: a(f"s_memrealtime s[{sTS+2}:{sTS+3}]\ns_waitcnt lgkmcnt(0)\ns_mov_b32 m0, s{sIdx}\ns_nop 0\nv_writelane_b32 v{vTS}, s{sTS+2}, m0")
    a(f"s_add_u32 s{sIdx}, s{sIdx}, 1\ns_lshl_b32 s{sT+1}, s{sIdx}, 1\nv_mov_b32 v{t}, s{sT+1}\nds_write_b32 v{vPg}, v{t}")

a(f"s_cmp_ge_u32 s2, 256\ns_cbranch_scc1 L_end")
a("s_load_dwordx8 s[4:11], s[0:1], 0\ns_load_dwordx8 s[12:19], s[0:1], 32")
if A.diag: a(f"s_memrealtime s[{sTS}:{sTS+1}]")
a(f"v_lshrrev_b32 v1, 6, v0\nv_and_b32 v0, 63, v0\nv_readfirstlane_b32 s{sWave}, v1")
a(f"s_and_b32 s{sMem}, s2, 15\ns_lshr_b32 s{sGrp}, s2, 4")
a(f"s_mov_b32 s{sRot}, "+("0" if A.rot=="none" else f"s{sGrp}"))
a(f"v_and_b32 v{vTmp}, 15, v0\nv_lshrrev_b32 v{vTmp+1}, 4, v0")
a(f"s_cmp_eq_u32 s{sWave}, 4\ns_cbranch_scc1 L_helper")
a(f"s_lshl_b32 s{sHead}, s{sGrp}, 3\ns_add_u32 s{sHead}, s{sHead}, s{sWave}")
a(f"v_lshlrev_b32 v{vTmp+2}, 4, v{vTmp}\nv_lshl_add_u32 v{vKoff}, v{vTmp+1}, 12, v{vTmp+2}")
a(f"s_mov_b32 s{sK}, 0")
chunk_id(sOff,sK); a(f"s_lshl_b32 s{sOff}, s{sOff}, 14")
a(f"s_lshl_b32 s{sT}, s{sHead}, 21\ns_lshl_b32 s{sT+1}, s{sHead}, 8\ns_mov_b32 s22, {2<<20}\ns_mov_b32 s23, 0x20000")
a("s_waitcnt lgkmcnt(0)")
stamp(1)
a(f"s_add_u32 s20, s6, s{sT}\ns_addc_u32 s21, s7, 0\ns_add_u32 s4, s4, s{sT+1}\ns_addc_u32 s5, s5, 0")
for j in range(D):
    if j==A.qpos: a(f"global_load_dwordx4 v[{vQ}:{vQ+3}], v{vTmp+2}, s[4:5]")
    load(j,CUR,sOff)
a(f"global_load_dwordx4 v[{vQB}:{vQB+3}], v{vTmp+2}, s[4:5] offset:1024")
stamp(2)
a(f"v_mov_b32 v{vFl}, {L_FLAG}\ns_mov_b32 s{sCap}, 0x10000")
a(f"s_mov_b32 s{NXT}, s20\ns_mov_b32 s{NXT+1}, s21\ns_mov_b32 s{NXT+2}, {2<<20}\ns_mov_b32 s{NXT+3}, 0x20000")
a(f"s_add_u32 s{sNB}, s20, {8<<20}\ns_addc_u32 s{sNB+1}, s21, 0")
a(f"s_add_u32 s{sVA}, s8, s{sT}\ns_addc_u32 s{sVA+1}, s9, 0\ns_add_u32 s{sVB}, s{sVA}, {8<<20}\ns_addc_u32 s{sVB+1}, s{sVA+1}, 0")
a(f"v_bfe_u32 v{vTmp+2}, v0, 1, 1\nv_bfe_u32 v{vTmp+3}, v0, 2, 1\nv_bfe_u32 v{vTmp+4}, v0, 3, 1")
a(f"v_xor_b32 v{vTmp+3}, v{vTmp+3}, v{vTmp+4}\nv_lshl_or_b32 v{vTmp+2}, v{vTmp+4}, 1, v{vTmp+2}\nv_lshl_or_b32 v{vTmp+2}, v{vTmp+3}, 2, v{vTmp+2}")
a(f"v_lshlrev_b32 v{vTmp+3}, 1, v{vTmp+1}\nv_xor_b32 v{vTmp+2}, v{vTmp+2}, v{vTmp+3}\nv_lshlrev_b32 v{vTmp+2}, 4, v{vTmp+2}")
a(f"v_lshl_add_u32 v{vLr}, v{vTmp}, 7, v{vTmp+2}\nv_xor_b32 v{vLr+1}, 16, v{vLr}")
a(f"s_lshl_b32 s{sT+2}, s{sWave}, 8\ns_add_u32 s{sT+2}, s{sT+2}, {L_ST}\nv_lshl_add_u32 v{vTmp+2}, v{vTmp}, 4, s{sT+2}\nv_lshl_add_u32 v{vSt}, v{vTmp+1}, 6, v{vTmp+2}")
a(f"v_lshlrev_b32 v{vTmp+2}, 5, v{vTmp}\nv_and_b32 v{vSo}, 16, v0\nv_add_u32 v{vSo}, v{vSo}, v{vTmp+2}\nv_lshrrev_b32 v{vTmp+2}, 5, v0\nv_lshl_add_u32 v{vSo}, v{vTmp+2}, 15, v{vSo}")
for x,mk in enumerate((0xAAAAAAAA,0xCCCCCCCC,0x000F000F)):
    a(f"s_mov_b32 s{sM+2*x}, {mk:#x}\ns_mov_b32 s{sM+2*x+1}, {mk:#x}")
a(f"s_lshl_b32 s{sT}, s{sHead}, 13\ns_lshl_b32 s{sT+1}, s{sMem}, 9\ns_add_u32 s{sT}, s{sT}, s{sT+1}")
a(f"s_add_u32 s{sT}, s{sT}, {PO_OFF}\ns_add_u32 s26, s18, s{sT}\ns_addc_u32 s27, s19, 0")
a(f"s_lshl_b32 s{sT}, s{sWave}, 2\ns_add_u32 s{sT}, s{sT}, {L_FLAG+F_PROG}\nv_mov_b32 v{vPg}, s{sT}")
for x in range(16): a(f"v_mov_b32 v{vAcc+x}, 0")
a(f"s_mov_b32 s{sSet}, 0\ns_mov_b32 s{sIdx}, 0\ns_mov_b32 s{sLast}, 0")
if A.qpos>1: a(f"s_waitcnt vmcnt({D-A.qpos+1})")
stamp(3)
def stage2(b):
    for p in range(4):
        t0=vT16+8*b+2*p; t1=t0+1
        a(f"v_cvt_pk_bf16_f32 v{vBh+p}, v{t0}, v{t1}")
        a(f"v_lshlrev_b32 v{vTmp}, 16, v{vBh+p}\nv_and_b32 v{vTmp+1}, 0xffff0000, v{vBh+p}")
        a(f"v_sub_f32 v{vTmp}, v{t0}, v{vTmp}\nv_sub_f32 v{vTmp+1}, v{t1}, v{vTmp+1}")
        a(f"v_cvt_pk_bf16_f32 v{vBl+p}, v{vTmp}, v{vTmp+1}")
    a("s_waitcnt lgkmcnt(0)\ns_nop 0" if b==0 else "s_nop 1")
    for B in (vBh,vBl):
        for rt in range(4):
            r=vFr+16*b+4*rt; c=vAcc+4*rt
            a(f"v_mfma_f32_16x16x32_bf16 v[{c}:{c+3}], v[{r}:{r+3}], v[{B}:{B+3}], v[{c}:{c+3}]")
a("L_kloop:")
a(f"s_add_u32 s{sK1}, s{sK}, 1\ns_and_b32 s{sK1}, s{sK1}, 7\ns_cbranch_scc1 L_ndk\ns_mov_b32 s{NXT}, s{sNB}\ns_mov_b32 s{NXT+1}, s{sNB+1}\nL_ndk:")
chunk_id(sOffN,sK1); a(f"s_lshl_b32 s{sOffN}, s{sOffN}, 14")
a(f"s_lshl_b32 s{sT+1}, s{sK}, 13\nv_add_u32 v{vLa}, s{sT+1}, v{vLr}\nv_add_u32 v{vLa+1}, s{sT+1}, v{vLr+1}")
for j in range(16):
    r=vBuf+4*j
    a(f"s_waitcnt vmcnt({D-1})")
    if j==0: stamp(4,True)
    if j==5: stamp(5,True)
    if j==A.ej+1: stamp(6,True)
    if j==15: stamp(7,True)
    a(f"v_dot2_f32_bf16 v{vT16+j}, v{r}, v{vQ}, 0")
    for x in range(1,4): a(f"v_dot2_f32_bf16 v{vT16+j}, v{r+x}, v{vQ+x}, v{vT16+j}")
    issue(j)
    if j==A.ej:
        a(f"s_cmp_lg_u32 s{sIdx}, 0\ns_cbranch_scc1 L_nobar\ns_barrier\nL_nobar:")
        a(f"s_add_u32 s{sT+1}, s{sK}, 1")
        lds_wait_ge(F_ER,f"s{sT+1}")
        for bb in range(2):
            for rt in range(4):
                rr=vFr+16*bb+4*rt
                a(f"ds_read_b128 v[{rr}:{rr+3}], v{vLa+bb} offset:{rt*2048}")
    if j==A.ej+1: stage2(0)
a("s_nop 2")
stage2(1)
rotate()
a(f"s_cmp_lg_u32 s{sIdx}, {A.preat}\ns_cbranch_scc1 L_nopre")
if not A.nopre:
    a(f"global_load_dwordx4 v[{vOO}:{vOO+3}], v{vSo}, s[26:27] {A.opol}")
a("L_nopre:")
progress(vTmp)
a(f"s_mov_b32 s{sK}, s{sK1}\ns_cmp_lg_u32 s{sK}, 0\ns_cbranch_scc1 L_kloop")
a("s_nop 4")
for sh in (8,4,2,1):
    for x in range(16): a(f"v_add_f32_dpp v{vAcc+x}, v{vAcc+x}, v{vAcc+x} row_ror:{sh} row_mask:0xf bank_mask:0xf")
for x in range(4):
    a(f"v_cndmask_b32 v{vAcc+x}, v{vAcc+x}, v{vAcc+4+x}, s[{sM}:{sM+1}]\nv_cndmask_b32 v{vAcc+8+x}, v{vAcc+8+x}, v{vAcc+12+x}, s[{sM}:{sM+1}]")
for x in range(4): a(f"v_cndmask_b32 v{vTmp+x}, v{vAcc+x}, v{vAcc+8+x}, s[{sM+2}:{sM+3}]")
a(f"s_mov_b64 exec, s[{sM+4}:{sM+5}]\nds_write_b128 v{vSt}, v[{vTmp}:{vTmp+3}]\ns_mov_b64 exec, -1")
for x in range(16): a(f"v_mov_b32 v{vAcc+x}, 0")
for x in range(4): a(f"v_mov_b32 v{vQ+x}, v{vQB+x}")
a(f"v_add_u32 v{vSt}, 1024, v{vSt}\ns_mov_b32 s{sNB}, s{sVA}\ns_mov_b32 s{sNB+1}, s{sVA+1}\ns_waitcnt lgkmcnt(0)")
half_progress(vTmp+4)
a(f"s_add_u32 s{sSet}, s{sSet}, 1\ns_cmp_lt_u32 s{sSet}, 2\ns_cbranch_scc1 L_kloop")
a(f"s_lshl_b32 s{sT}, s{sWave}, 8\ns_add_u32 s{sT}, s{sT}, {L_W}\nv_lshrrev_b32 v{vTmp+5}, 4, v0\nv_lshl_add_u32 v{vLr}, v{vTmp+5}, 6, s{sT}\nv_add_u32 v{vLr+1}, {L_WP-L_W}, v{vLr}")
for x in range(8): a(f"v_mov_b32 v{vT+x}, 0")
for x in range(4): a(f"v_not_b32 v{vOO+x}, v{vOO+x}")
lds_wait_ge(F_WR,1,tmpv=vBl)
a(f"s_mov_b32 s{sH}, 32\ns_mov_b32 s{sRem}, 1\nv_mov_b32 v{vLa}, v{vLr}")
def halfstep(b):
    W=vAcc+8*b
    a(f"ds_read_b128 v[{W}:{W+3}], v{vLa}\nds_read_b128 v[{W+4}:{W+7}], v{vLa} offset:16")
    a(f"s_cmp_eq_u32 s{sRem}, 0\ns_cbranch_scc1 L_vi{b}")
    a(f"s_add_u32 s{sOff}, s{sOff}, 2048\nv_add_u32 v{vLa}, 32, v{vLa}\ns_mov_b32 s{sRem}, 0\ns_mov_b32 s{sNew}, 0\ns_branch L_vgo{b}")
    a(f"L_vi{b}:\ns_add_u32 s{sIdx}, s{sIdx}, 1\ns_cmp_ge_u32 s{sIdx}, {J0}\ns_cbranch_scc1 L_vmb{b}")
    a(f"s_mov_b32 s{sNew}, 0\ns_and_b32 s{sK1}, s{sIdx}, 7\ns_cbranch_scc1 L_ndv{b}\ns_mov_b32 s{NXT}, s{sVB}\ns_mov_b32 s{NXT+1}, s{sVB+1}\ns_mov_b32 s{sNew}, 2\nL_ndv{b}:")
    chunk_id(sOff,sK1)
    a(f"s_lshl_b32 s{sOff}, s{sOff}, 14\nv_add_u32 v{vLa}, {1024-32}, v{vLa}\ns_mov_b32 s{sRem}, 1\ns_branch L_vgo{b}")
    a(f"L_vmb{b}:\ns_and_b32 s{sT+1}, s{sIdx}, 3\ns_lshl_b32 s{sT+2}, s{sT+1}, 2\nv_add_u32 v{vLa+1}, s{sT+2}, v{vFl}\ns_lshl_b32 s{sT+1}, s{sT+1}, 10")
    a(f"L_vmbp{b}:\nds_read_b32 v{vBl}, v{vLa+1} offset:{F_MB}\ns_waitcnt lgkmcnt(0)\nv_readfirstlane_b32 s{sOff}, v{vBl}\ns_lshr_b32 s{sT}, s{sOff}, 16\ns_cmp_eq_u32 s{sT}, s{sIdx}\ns_cbranch_scc1 L_vmbok{b}\ns_sleep 1\n{CAP}\ns_branch L_vmbp{b}\nL_vmbok{b}:")
    a(f"s_bfe_u32 s{sRem}, s{sOff}, {9|(1<<16)}\ns_bfe_u32 s{sT+2}, s{sOff}, {8|(1<<16)}\ns_and_b32 s{sOff}, s{sOff}, 0xff\ns_cmp_eq_u32 s{sOff}, {END}\ns_cselect_b32 s{NXT+2}, 0, s{NXT+2}\ns_cselect_b32 s{sLast}, 1, 0")
    a(f"s_lshl_b32 s{sOff}, s{sOff}, 3\ns_add_u32 s{sOff}, s{sOff}, s{sT+2}\ns_lshl_b32 s{sOff}, s{sOff}, 11\ns_lshl_b32 s{sT+2}, s{sT+2}, 5\ns_add_u32 s{sT+1}, s{sT+1}, s{sT+2}\nv_add_u32 v{vLa}, s{sT+1}, v{vLr+1}\ns_mov_b32 s{sNew}, s{sIdx}")
    a(f"L_vgo{b}:")
    for jj in range(8):
        j=8*b+jj; r=vBuf+4*j; n=vBuf+4*(j^8)
        a("s_waitcnt vmcnt(7)" + (" lgkmcnt(0)" if jj==0 else ""))
        for x in range(4):
            a(f"v_lshlrev_b32 v{vTmp+2*x}, 16, v{r+x}\nv_and_b32 v{vTmp+2*x+1}, 0xffff0000, v{r+x}")
        a(f"buffer_load_dwordx4 v[{n}:{n+3}], v{vKoff}, s[{NXT}:{NXT+3}], s{sOff} offen offset:{jj*256} {POL}")
        for x in range(8): a(f"v_fmac_f32 v{vT+x}, v{W+jj}, v{vTmp+x}")
    if A.diag==1 and b==1: a(f"s_memrealtime s[{sTS+2}:{sTS+3}]\ns_lshr_b32 m0, s{sH}, 1\ns_waitcnt lgkmcnt(0)\nv_writelane_b32 v{vTS}, s{sTS+2}, m0")
    a(f"s_add_u32 s{sH}, s{sH}, 1\nv_mov_b32 v{vBl+1}, s{sH}\nds_write_b32 v{vPg}, v{vBl+1}")
    a(f"s_cmp_lg_u32 s{sLast}, 0\ns_cbranch_scc1 L_vdone")
    a(f"s_cmp_eq_u32 s{sNew}, 0\ns_cbranch_scc1 L_vn{b}\ns_cmp_lg_u32 s{sNew}, 2\ns_cbranch_scc1 L_vna{b}")
    for x in range(8): a(f"v_mov_b32 v{vTA+x}, v{vT+x}\nv_mov_b32 v{vT+x}, 0")
    a(f"L_vna{b}:")
    lds_wait_ge(F_WR,f"s{sNew}",tmpv=vBl)
    a(f"L_vn{b}:")
a("L_vloop:")
halfstep(0); halfstep(1)
a("s_branch L_vloop\nL_vdone:")
for x in range(4): a(f"v_permlane16_swap_b32 v{vTA+x}, v{vTA+4+x}")
for x in range(4): a(f"v_permlane16_swap_b32 v{vT+x}, v{vT+4+x}")
for x in range(4): a(f"v_add_f32 v{vTA+x}, v{vTA+x}, v{vTA+4+x}")
for x in range(4): a(f"v_add_f32 v{vT+x}, v{vT+x}, v{vT+4+x}")
a(f"v_mov_b32 v{vTmp}, {DONE}\ns_nop 0")
for x in range(4): a(f"v_permlane32_swap_b32 v{vTA+x}, v{vT+x}")
for x in range(4): a(f"v_add_f32 v{vT+x}, v{vT+x}, v{vTA+x}")
for x in range(4): a(f"v_bfi_b32 v{vBh+x}, 1, v{vOO+x}, v{vT+x}")
a(f"global_store_dwordx4 v{vSo}, v[{vBh}:{vBh+3}], s[26:27] sc1")
a(f"ds_write_b32 v{vPg}, v{vTmp}")
if A.diag in (1,3):
    a(f"s_memrealtime s[{sTS+2}:{sTS+3}]\ns_lshl_b32 s{sT}, s2, 2\ns_add_u32 s{sT}, s{sT}, s{sWave}\ns_lshl_b32 s{sT}, s{sT}, 5\ns_getreg_b32 s{sT+1}, hwreg(HW_REG_XCC_ID)\ns_waitcnt lgkmcnt(0)")
    a(f"v_mov_b32 v8, s{sTS}\nv_mov_b32 v9, s{sTS+1}\nv_mov_b32 v10, s{sTS+2}\nv_mov_b32 v11, s{sTS+3}\nv_mov_b32 v12, s{sT+1}\ns_add_u32 s{sH}, s{sH}, 1\ns_lshr_b32 s{sH}, s{sH}, 1\nv_mov_b32 v13, s{sH}\nv_mov_b32 v14, 0\nv_mov_b32 v15, 0\nv_mov_b32 v7, s{sT}")
    a(f"s_lshl_b32 s{sT}, s{sT}, 3\ns_add_u32 s{sT}, s{sT}, 0x1000000\nv_lshl_add_u32 v16, v0, 2, s{sT}\nglobal_store_dword v16, v{vTS}, s[18:19]")
    a("s_mov_b64 exec, 1\nglobal_store_dwordx4 v7, v[8:11], s[18:19]\nglobal_store_dwordx4 v7, v[12:15], s[18:19] offset:16")
a("s_endpgm")
a("L_helper:")
vE0=1; vE1=2; vLo=3; vPw=4; vPr=5; vWw=7; vTr=8; vH=12; vP=24; vW=32; vA=48; vL=80; vOS=112; vTc=128; vWc=132; vTk=133; vZ=134; vOne=135; vL8=136; vGs=137; vGo=138; vOwn=172
vOP=140
sLB=49; sRed=50; sHd=51; sOwn=52
a(f"v_mov_b32 v{vFl}, {L_FLAG}")
for x in range(4): a(f"v_mov_b32 v{vH+x}, 0")
a(f"ds_write_b128 v{vFl}, v[{vH}:{vH+3}]\nds_write_b128 v{vFl}, v[{vH}:{vH+3}] offset:16\nds_write_b128 v{vFl}, v[{vH}:{vH+3}] offset:32")
a(f"v_bfe_u32 v{vTmp+2}, v0, 4, 1\nv_bfe_u32 v{vTmp+3}, v0, 5, 1\nv_and_b32 v{vTmp+4}, 7, v0\nv_lshrrev_b32 v{vTmp+5}, 3, v0\nv_lshlrev_b32 v{vTmp+5}, 14, v{vTmp+5}")
a(f"v_lshl_or_b32 v{vTmp+6}, v{vTmp+3}, 2, v{vTmp+2}\nv_xor_b32 v{vTmp+6}, v{vTmp+6}, v{vTmp+4}")
a(f"v_lshl_add_u32 v{vE0}, v{vTmp+6}, 4, v{vTmp+5}")
a(f"v_xor_b32 v{vTmp+6}, 6, v{vTmp+6}\nv_lshl_add_u32 v{vE1}, v{vTmp+6}, 4, v{vTmp+5}\nv_add_u32 v{vE1}, {8*16384}, v{vE1}")
a(f"s_mov_b32 s22, {1<<20}\ns_mov_b32 s23, 0x20000\ns_mov_b32 s{sK}, 0\ns_mov_b32 s{sLB}, {L_E}\ns_waitcnt lgkmcnt(0)\ns_mov_b32 s20, s10\ns_mov_b32 s21, s11")
def dma(pol):
    a(f"s_lshl_b32 s{sOff}, s{sOff}, 7")
    for rg in range(4):
        for e in range(2):
            a(f"s_add_u32 m0, s{sLB}, {rg*2048+e*1024}\ns_add_u32 s{sT}, s{sOff}, {rg*16*16384}")
            a(f"buffer_load_dwordx4 v{vE0+e}, s[20:23], s{sT} offen {pol} lds")
def dma_next():
    chunk_id(sOff,sK); dma(EPOL); a(f"s_add_u32 s{sK}, s{sK}, 1\ns_add_u32 s{sLB}, s{sLB}, 8192")
def setflag(flag,val):
    a(f"v_mov_b32 v{vH}, {val}\nds_write_b32 v{vFl}, v{vH} offset:{flag}")
dma_next(); dma_next()
a(f"s_mov_b32 s{sCap}, 0x10000\nv_lshlrev_b32 v{vLo}, 4, v0\nv_lshlrev_b32 v{vL8}, 3, v0\nv_mov_b32 v{vZ}, 0\nv_mov_b32 v{vOne}, 1")
a(f"s_lshl_b32 s{sHd}, s{sGrp}, 3\ns_add_u32 s{sHd}, s{sHd}, s{sMem}\ns_lshr_b32 s{sRed}, s{sMem}, 2")
a(f"s_lshl_b32 s{sT}, s{sGrp}, 15\ns_add_u32 s{sT+1}, s{sT}, {PS_OFF}\ns_add_u32 s24, s18, s{sT+1}\ns_addc_u32 s25, s19, 0\ns_mov_b32 s26, 32768\ns_mov_b32 s27, 0x20000")
a(f"s_lshl_b32 s{sT}, s{sHd}, 13\ns_add_u32 s{sT}, s{sT}, {PO_OFF}\ns_add_u32 s28, s18, s{sT}\ns_addc_u32 s29, s19, 0\ns_mov_b32 s30, 8192\ns_mov_b32 s31, 0x20000")
a(f"s_lshl_b32 s{sT}, s{sHd}, 7\ns_add_u32 s{sT}, s{sT}, {PP_OFF}\ns_add_u32 s76, s18, s{sT}\ns_addc_u32 s77, s19, 0")
a(f"s_mul_i32 s{sT}, s{sGrp}, {A.cstride}\ns_add_u32 s{sT}, s{sT}, {CN_OFF}\ns_add_u32 s74, s18, s{sT}\ns_addc_u32 s75, s19, 0\ns_mov_b32 s78, 4096")
a(f"s_lshl_b32 s{sT}, s{sGrp}, 4\ns_add_u32 s16, s16, s{sT}\ns_addc_u32 s17, s17, 0")
a("s_waitcnt vmcnt(8)"); setflag(F_ER,1)
a("s_waitcnt lgkmcnt(0)\ns_barrier\ns_waitcnt vmcnt(0)"); setflag(F_ER,2)
dma_next()
a(f"s_and_b32 s{sT}, s{sMem}, 3\ns_lshl_b32 s{sT}, s{sT}, 8\nv_and_b32 v{vGo}, 15, v0\nv_lshl_add_u32 v{vGo}, v{vGo}, 4, s{sT}\nv_lshl_add_u32 v{vGo}, v{vTmp+1}, 10, v{vGo}")
a(f"v_mov_b32 v{vW}, {SENT}\nv_mov_b32 v{vW+1}, {SENT}\ns_lshl_b32 s{sOwn}, s{sMem}, 10\ns_add_u32 s{sT+1}, s{sOwn}, 16384")
a("L_he:")
dma_next()
a(f"s_waitcnt vmcnt(8)\ns_sub_u32 s{sT}, s{sK}, 1"); setflag(F_ER,f"s{sT}")
a(f"s_cmp_lg_u32 s{sK}, {A.prek}\ns_cbranch_scc1 L_hnp")
if not A.nopre:
    a(f"buffer_load_dwordx4 v[{vOwn}:{vOwn+3}], v{vLo}, s[24:27], s{sOwn} offen {A.opol}\nbuffer_load_dwordx4 v[{vOwn+4}:{vOwn+7}], v{vLo}, s[24:27], s{sT+1} offen {A.opol}")
a(f"s_cmp_ge_u32 s{sMem}, 8\ns_cbranch_scc1 L_hnp")
if not A.nopre:
    for t in range(4): a(f"s_lshl_b32 s{sT+2}, s{sRed}, 14\ns_add_u32 s{sT+2}, s{sT+2}, {t*4096}\nbuffer_load_dwordx4 v[{vOS+4*t}:{vOS+4*t+3}], v{vGo}, s[24:27], s{sT+2} offen {A.opol}")
    for t in range(8): a(f"buffer_load_dwordx4 v[{vOP+4*t}:{vOP+4*t+3}], v{vLo}, s[28:31], {'0' if t<4 else 's78'} offen offset:{(t%4)*1024} {A.opol}")
a(f"s_mov_b64 exec, 0xffff\nglobal_store_dwordx2 v{vL8}, v[{vW}:{vW+1}], s[76:77] sc1\ns_mov_b64 exec, 1")
a(f"s_cmp_lg_u32 s{sMem}, 0\ns_cbranch_scc1 L_hnz\nglobal_store_dword v{vZ}, v{vZ}, s[74:75] sc1\nL_hnz:\ns_mov_b64 exec, -1")
a("L_hnp:")
a(f"s_cmp_lg_u32 s{sK}, {A.prek+1}\ns_cbranch_scc1 L_hnq\ns_cmp_ge_u32 s{sMem}, 8\ns_cbranch_scc1 L_hnq")
a(f"s_mov_b64 exec, 1\nglobal_atomic_add v{vZ}, v{vOne}, s[16:17] {A.dpol}\ns_mov_b64 exec, -1\nL_hnq:")
a(f"s_cmp_lt_u32 s{sK}, 8\ns_cbranch_scc1 L_he")
a(f"s_mov_b32 s20, s12\ns_mov_b32 s21, s13\ns_mov_b32 s{sK}, 0")
dma_next()
a("s_waitcnt vmcnt(8)"); setflag(F_ER,8)
dma_next()
a("L_hf:")
dma_next()
a(f"s_waitcnt vmcnt(16)\ns_cmp_lt_u32 s{sK}, 8\ns_cbranch_scc1 L_hf")
a(f"L_hinit:\nglobal_load_dword v{vH}, v{vZ}, s[16:17] sc1\ns_waitcnt vmcnt(0)\nv_readfirstlane_b32 s{sT}, v{vH}\ns_cmp_ge_u32 s{sT}, 8\ns_cbranch_scc1 L_hinit_ok\ns_sleep 8\n{CAP}\ns_branch L_hinit\nL_hinit_ok:")
a(f"v_bfe_u32 v{vTmp+2}, v0, 3, 1\nv_bfe_u32 v{vTmp+3}, v0, 4, 1\nv_mul_u32_u24 v{vTmp+3}, 6, v{vTmp+3}\nv_or_b32 v{vTmp+2}, v{vTmp+2}, v{vTmp+3}")
a(f"v_and_b32 v{vTmp+3}, 3, v0\nv_lshlrev_b32 v{vTmp+3}, 1, v{vTmp+3}\nv_xor_b32 v{vTmp+2}, v{vTmp+2}, v{vTmp+3}\nv_lshlrev_b32 v{vTmp+2}, 4, v{vTmp+2}")
a(f"v_bfe_u32 v{vTmp+3}, v0, 2, 2\nv_lshl_add_u32 v{vTmp+3}, v{vTmp+1}, 3, v{vTmp+3}\nv_lshl_add_u32 v{vTr}, v{vTmp+3}, 7, v{vTmp+2}")
a(f"v_xor_b32 v{vTr+1}, 16, v{vTr}\nv_xor_b32 v{vTr+2}, 64, v{vTr}\nv_add_u32 v{vTr+2}, 512, v{vTr+2}\nv_xor_b32 v{vTr+3}, 16, v{vTr+2}")
a(f"v_and_b32 v{vPw}, 3, v0\nv_lshlrev_b32 v{vPw}, 5, v{vPw}\nv_bfe_u32 v{vPr}, v0, 2, 2\nv_lshl_add_u32 v{vPw}, v{vPr}, 3, v{vPw}\nv_lshl_add_u32 v{vPw}, v{vTmp+1}, 7, v{vPw}\nv_add_u32 v{vPw}, {L_P}, v{vPw}")
a(f"v_and_b32 v{vPr}, 3, v0\nv_lshlrev_b32 v{vPr}, 7, v{vPr}\nv_lshl_add_u32 v{vPr}, v{vTmp+1}, 4, v{vPr}\nv_add_u32 v{vPr}, {L_P}, v{vPr}")
a(f"v_and_b32 v{vWw}, 3, v0\nv_lshlrev_b32 v{vWw}, 8, v{vWw}\nv_lshl_add_u32 v{vWw}, v{vTmp+1}, 6, v{vWw}")
a(f"s_mov_b32 s{sM}, 0x000f000f\ns_mov_b32 s{sM+1}, 0x000f000f\ns_mov_b32 s{sSet}, 0")
a(f"s_lshl_b32 s{sT}, s{sGrp}, 10\ns_add_u32 s{sT}, s{sT}, {PP_OFF}\ns_add_u32 s{sM+2}, s18, s{sT}\ns_addc_u32 s{sM+3}, s19, 0")
def wcompute():
    for nt in range(4):
        for kt in range(2):
            for h in range(2):
                r=vA+8*nt+4*kt+2*h
                a(f"ds_read_b64_tr_b16 v[{r}:{r+1}], v{vTc+2*h+(nt>>1)} offset:{kt*4096+(nt&1)*8}")
    for nt in range(4):
        a(f"s_waitcnt lgkmcnt({12-4*nt})")
        c=vW+4*nt; r=vA+8*nt
        a(f"v_mfma_f32_16x16x32_bf16 v[{c}:{c+3}], v[{r}:{r+3}], v[{vP}:{vP+3}], 0")
        a(f"v_mfma_f32_16x16x32_bf16 v[{c}:{c+3}], v[{r+4}:{r+7}], v[{vP+4}:{vP+7}], v[{c}:{c+3}]")
    a(f"s_nop 7\ns_mov_b64 exec, s[{sM}:{sM+1}]")
    for nt in range(4): a(f"ds_write_b128 v{vWc}, v[{vW+4*nt}:{vW+4*nt+3}] offset:{nt*16}")
    a("s_mov_b64 exec, -1\ns_waitcnt lgkmcnt(0)")
def tagcheck(n,new,old,L,sleep):
    a(f"v_xor_b32 v{vH}, v{new}, v{old}")
    for x in range(1,n): a(f"v_bitop3_b32 v{vH}, v{vH}, v{new+x}, v{old+x} bitop3:0x60")
    a(f"v_and_b32 v{vH}, 1, v{vH}\nv_cmp_eq_u32 vcc, 0, v{vH}\ns_nop 4\ns_cbranch_vccz {L}_ok\ns_sleep {sleep}\n{CAP}\ns_branch {L}\n{L}_ok:")
    for x in range(n): a(f"v_and_b32 v{new+x}, -2, v{new+x}")
a(f"v_add_u32 v{vGs}, {L_ST}, v{vLo}")
for x in range(8): a(f"v_not_b32 v{vOwn+x}, v{vOwn+x}")
a("L_hset:")
a(f"s_lshl_b32 s{sIdx}, s{sSet}, 4\ns_add_u32 s{sIdx}, s{sIdx}, 17")
prog_wait_ge(f"s{sIdx}",vH,4)
a(f"ds_read_b128 v[{vL}:{vL+3}], v{vGs}\ns_lshl_b32 s{sK1}, s{sSet}, 14\ns_add_u32 s{sT+1}, s{sOwn}, s{sK1}\ns_waitcnt lgkmcnt(0)")
for x in range(4): a(f"v_bfi_b32 v{vL+x}, 1, v{vOwn+x}, v{vL+x}")
if not A.nopub: a(f"buffer_store_dwordx4 v[{vL}:{vL+3}], v{vLo}, s[24:27], s{sT+1} offen {A.spol}")
for x in range(4): a(f"v_mov_b32 v{vOwn+x}, v{vOwn+4+x}")
a(f"v_add_u32 v{vGs}, 1024, v{vGs}")
a(f"s_cmp_lg_u32 s{sRed}, s{sSet}\ns_cbranch_scc1 L_hcons")
a(f"s_cmp_eq_u32 s{sSet}, 0\ns_cselect_b32 s{sIdx}, {A.trigRA}, {A.trigRB}")
prog_wait_ge(f"s{sIdx}",vH,8)
a("L_hpoll:")
for t in range(4): a(f"s_add_u32 s{sT+1}, s{sK1}, {t*4096}\nbuffer_load_dwordx4 v[{vL+4*t}:{vL+4*t+3}], v{vGo}, s[24:27], s{sT+1} offen sc1")
a("s_waitcnt vmcnt(0)")
if not (A.nopub or A.nopre): tagcheck(16,vL,vOS,"L_hpoll",A.rsleep)
for t in range(1,4):
    for x in range(4): a(f"v_add_f32 v{vL+x}, v{vL+x}, v{vL+4*t+x}")
for swap in ("v_permlane16_swap_b32","v_permlane32_swap_b32"):
    for x in range(4): a(f"v_mov_b32 v{vL+4+x}, v{vL+x}")
    a("s_nop 0")
    for x in range(4): a(f"{swap} v{vL+x}, v{vL+4+x}")
    for x in range(4): a(f"v_add_f32 v{vL+x}, v{vL+x}, v{vL+4+x}")
X=vL; T=vH
for x in range(4):
    a(f"v_cvt_pk_bf16_f32 v{X+x}, v{X+x}, v{X+x}\nv_and_b32 v{X+x}, 0xffff0000, v{X+x}\nv_mul_f32 v{X+x}, 0x3db504f3, v{X+x}")
    a(f"v_cvt_pk_bf16_f32 v{X+x}, v{X+x}, v{X+x}\nv_and_b32 v{X+x}, 0xffff0000, v{X+x}")
a(f"v_max3_f32 v{T}, v{X}, v{X+1}, v{X+2}\nv_max_f32 v{T}, v{T}, v{X+3}")
for sh in (8,4,2,1): a(f"s_nop 1\nv_max_f32_dpp v{T}, v{T}, v{T} row_ror:{sh} row_mask:0xf bank_mask:0xf")
for x in range(4): a(f"v_sub_f32 v{X+x}, v{X+x}, v{T}\nv_mul_f32 v{X+x}, 0x3fb8aa3b, v{X+x}\nv_exp_f32 v{X+x}, v{X+x}")
a(f"s_nop 0\nv_add_f32 v{T}, v{X}, v{X+1}\nv_add_f32 v{T+1}, v{X+2}, v{X+3}\nv_add_f32 v{T}, v{T}, v{T+1}")
for sh in (8,4,2,1): a(f"s_nop 1\nv_add_f32_dpp v{T}, v{T}, v{T} row_ror:{sh} row_mask:0xf bank_mask:0xf")
a(f"v_rcp_f32 v{T}, v{T}\nv_mov_b32 v{T+1}, 0x7fc07fc0")
for x in range(4): a(f"v_mul_f32 v{X+x}, v{X+x}, v{T}")
a(f"v_cvt_pk_bf16_f32 v{T+2}, v{X}, v{X+1}\nv_cvt_pk_bf16_f32 v{T+3}, v{X+2}, v{X+3}")
for x in (2,3): a(f"v_cmp_eq_u32 vcc, {SENT}, v{T+x}\ns_nop 1\nv_cndmask_b32 v{T+x}, v{T+x}, v{T+1}, vcc")
a(f"s_mov_b64 exec, 0xffff\nglobal_store_dwordx2 v{vL8}, v[{T+2}:{T+3}], s[76:77] sc1\ns_mov_b64 exec, -1")
a("L_hcons:")
a(f"s_cmp_eq_u32 s{sSet}, 0\ns_cselect_b32 s{sIdx}, {A.trigA}, {A.trigB}")
prog_wait_ge(f"s{sIdx}",vH,8)
a(f"L_hpp:\nglobal_load_dwordx2 v[{vL}:{vL+1}], v{vL8}, s[{sM+2}:{sM+3}] sc1\ns_waitcnt vmcnt(0)\nv_max_u32 v{vH}, v{vL}, v{vL+1}\nv_cmp_eq_u32 vcc, {SENT}, v{vH}\ns_nop 4\ns_cbranch_vccz L_hpp_ok\ns_sleep 8\n{CAP}\ns_branch L_hpp\nL_hpp_ok:")
a(f"ds_write_b64 v{vPw}, v[{vL}:{vL+1}]\ns_waitcnt lgkmcnt(0)")
a(f"ds_read_b128 v[{vP}:{vP+3}], v{vPr}\nds_read_b128 v[{vP+4}:{vP+7}], v{vPr} offset:64\ns_waitcnt lgkmcnt(0)")
for x in range(4): a(f"v_add_u32 v{vTc+x}, {L_F}, v{vTr+x}")
a(f"s_lshl_b32 s{sT}, s{sSet}, 13\ns_add_u32 s{sT}, s{sT}, {L_W}\nv_add_u32 v{vWc}, s{sT}, v{vWw}")
a(f"s_cmp_eq_u32 s{sSet}, 0\ns_cselect_b32 s{sK}, 8, {S}")
a("L_hw:")
wcompute()
for x in range(4): a(f"v_add_u32 v{vTc+x}, 8192, v{vTc+x}")
a(f"v_add_u32 v{vWc}, 1024, v{vWc}")
a(f"s_sub_u32 s{sK}, s{sK}, 1\ns_cmp_lg_u32 s{sK}, 0\ns_cbranch_scc1 L_hw")
a(f"s_add_u32 s{sSet}, s{sSet}, 1\nv_mov_b32 v{vH}, s{sSet}\nds_write_b32 v{vFl}, v{vH} offset:{F_WR}")
a(f"s_add_u32 s{sM+2}, s{sM+2}, 512\ns_addc_u32 s{sM+3}, s{sM+3}, 0\ns_cmp_lt_u32 s{sSet}, 2\ns_cbranch_scc1 L_hset")
a(f"s_mov_b32 s{sIdx}, {J0}\ns_mov_b32 s{sH}, {2*J0}")
a("L_hp:")
a(f"s_sub_u32 s{sK1}, s{sH}, {A.LAH}")
prog_wait_ge(f"s{sK1}",vH,1)
a(f"s_mov_b64 exec, 1\nglobal_atomic_add v{vTk}, v{vZ}, v{vOne}, s[74:75] sc0 {A.apol}\ns_mov_b64 exec, -1")
a(f"s_cmp_eq_u32 s{sIdx}, {J0}\ns_cbranch_scc1 L_hp2")
a(f"s_sub_u32 s{sK1}, s{sIdx}, 1\ns_and_b32 s{sT+1}, s{sK1}, 3\ns_lshl_b32 s{sT+2}, s{sT+1}, 13\ns_lshl_b32 s{sT+1}, s{sT+1}, 10\ns_add_u32 s{sT+1}, s{sT+1}, {L_WP}")
for x in range(4): a(f"v_add_u32 v{vTc+x}, s{sT+2}, v{vTr+x}")
a(f"v_add_u32 v{vWc}, s{sT+1}, v{vWw}\ns_waitcnt vmcnt(1)")
wcompute()
a(f"v_mov_b32 v{vH}, s{sK1}\nds_write_b32 v{vFl}, v{vH} offset:{F_WR}")
a("L_hp2:")
a(f"s_waitcnt vmcnt(0)\nv_readfirstlane_b32 s{sK1}, v{vTk}")
a(f"s_sub_u32 s{sT+1}, s{sK1}, {NFULL}\ns_and_b32 s{sT+3}, s{sT+1}, 1\ns_lshl_b32 s{sT+3}, s{sT+3}, 8\ns_lshr_b32 s{sT+1}, s{sT+1}, 1\ns_add_u32 s{sT+1}, s{sT+1}, {NFULL}")
a(f"s_cmp_lt_u32 s{sK1}, {NFULL}\ns_cselect_b32 s{sT+1}, s{sK1}, s{sT+1}\ns_cselect_b32 s{sT+3}, 512, s{sT+3}\ns_cselect_b32 s{sT+4}, 2, 1\ns_add_u32 s{sH}, s{sH}, s{sT+4}")
a(f"s_lshr_b32 s{sK}, s{sT+1}, 4\ns_add_u32 s{sK}, s{sK}, {S}\ns_and_b32 s{sT+2}, s{sT+1}, 15")
chunk_id(sOff,sK,sT+2)
a(f"s_cmp_ge_u32 s{sK1}, {NPOOL}\ns_cselect_b32 s{sOff}, {END}, s{sOff}")
a(f"s_lshl_b32 s{sT+1}, s{sIdx}, 16\ns_or_b32 s{sT+1}, s{sT+1}, s{sOff}\ns_or_b32 s{sT+1}, s{sT+1}, s{sT+3}\ns_and_b32 s{sT+2}, s{sIdx}, 3\ns_lshl_b32 s{sT+3}, s{sT+2}, 2")
a(f"v_add_u32 v{vH+1}, s{sT+3}, v{vFl}\nv_mov_b32 v{vH}, s{sT+1}\nds_write_b32 v{vH+1}, v{vH} offset:{F_MB}")
a(f"s_cmp_eq_u32 s{sOff}, {END}\ns_cbranch_scc1 L_hfin")
a(f"s_lshl_b32 s{sLB}, s{sT+2}, 13")
dma(A.ppol)
a(f"s_add_u32 s{sIdx}, s{sIdx}, 1\ns_branch L_hp")
a("L_hfin:")
a(f"s_cmp_ge_u32 s{sMem}, 8\ns_cbranch_scc1 L_end")
a(f"s_lshl_b32 s{sT+2}, s{sHd}, 8\ns_add_u32 s14, s14, s{sT+2}\ns_addc_u32 s15, s15, 0")
prog_wait_ge(DONE,vH,2)
a("L_fpoll:")
for t in range(8): a(f"buffer_load_dwordx4 v[{vL+4*t}:{vL+4*t+3}], v{vLo}, s[28:31], {'0' if t<4 else 's78'} offen offset:{(t%4)*1024} sc1")
for t in range(8):
    a(f"s_waitcnt vmcnt({7-t})")
    for x in range(4):
        r=vL+4*t+x; o=vOP+4*t+x
        a(f"v_xor_b32 v{vH}, v{r}, v{o}" if t==0 and x==0 else f"v_bitop3_b32 v{vH}, v{vH}, v{r}, v{o} bitop3:0x60")
        a(f"v_and_b32 v{r}, -2, v{r}")
        if t: a(f"v_add_f32 v{vL+x}, v{vL+x}, v{r}")
if not A.nopre:
    a(f"v_and_b32 v{vH}, 1, v{vH}\nv_cmp_eq_u32 vcc, 0, v{vH}\ns_nop 4\ns_cbranch_vccz L_fgot\ns_sleep {A.fsleep}\n{CAP}\ns_branch L_fpoll\nL_fgot:")
for x in range(4): a(f"v_mov_b32 v{vL+4+x}, v{vL+x}")
a("s_nop 1")
for x in range(4): a(f"v_permlane32_swap_b32 v{vL+x}, v{vL+4+x}")
for x in range(4): a(f"v_add_f32 v{vL+x}, v{vL+x}, v{vL+4+x}")
a(f"v_cvt_pk_bf16_f32 v{vH}, v{vL}, v{vL+1}\nv_cvt_pk_bf16_f32 v{vH+1}, v{vL+2}, v{vL+3}\ns_mov_b32 exec_hi, 0\nglobal_store_dwordx2 v{vL8}, v[{vH}:{vH+1}], s[14:15]")
if A.diag in (1,3):
    a(f"s_waitcnt vmcnt(0)\ns_memrealtime s[{sTS+2}:{sTS+3}]\ns_lshl_b32 s{sT}, s2, 3\ns_add_u32 s{sT}, s{sT}, 0x10000\ns_waitcnt lgkmcnt(0)\ns_mov_b64 exec, 1\nv_mov_b32 v7, s{sT}\nv_mov_b32 v10, s{sTS+2}\nv_mov_b32 v11, s{sTS+3}\nglobal_store_dwordx2 v7, v[10:11], s[18:19]")
a("L_end:\ns_endpgm")
print(emit(A.out,[(NAME,a.text(),NV,88,None)],[(NAME,256,320,LDS_BYTES)]))
```

```python
import sys, argparse
from common import *
ap=argparse.ArgumentParser()
ap.add_argument("out"); ap.add_argument("--pol",default="nt"); ap.add_argument("--epol",default="")
ap.add_argument("--rot",default="none"); ap.add_argument("--diag",type=int,default=0)
ap.add_argument("--trigRA",type=int,default=18); ap.add_argument("--trigRB",type=int,default=34)
ap.add_argument("--trigA",type=int,default=24); ap.add_argument("--trigB",type=int,default=40)
ap.add_argument("--fsleep",type=int,default=1); ap.add_argument("--S",type=int,default=5)
ap.add_argument("--LAH",type=int,default=3)
ap.add_argument("--D",type=int,default=8); ap.add_argument("--ej",type=int,default=13)
ap.add_argument("--apol",default="nt"); ap.add_argument("--ppol",default=""); ap.add_argument("--cstride",type=int,default=2304)
ap.add_argument("--opol",default="sc1"); ap.add_argument("--nopub",type=int,default=0); ap.add_argument("--nopre",type=int,default=0)
ap.add_argument("--qpos",type=int,default=2)
ap.add_argument("--spol",default="sc1"); ap.add_argument("--dpol",default=""); ap.add_argument("--preat",type=int,default=1)
ap.add_argument("--prek",type=int,default=5); ap.add_argument("--rsleep",type=int,default=16)
ap.add_argument("--latin",type=int,default=0)
ap.add_argument("--NH",type=int,default=1); ap.add_argument("--dbl",type=int,default=0)
ap.add_argument("--pad",type=int,default=12000)
ap.add_argument("--prot",type=int,default=0); ap.add_argument("--outpol",default="")
ap.add_argument("--xw",type=int,default=1)
ap.add_argument("--efpre",type=int,default=0); ap.add_argument("--pfpol",default=""); ap.add_argument("--noslab",type=int,default=0); ap.add_argument("--fdepth",type=int,default=2)
ap.add_argument("--slabtest",type=int,default=0); ap.add_argument("--pace",type=int,default=0)
ap.add_argument("--pslay",type=int,default=1)
ap.add_argument("--nopo",type=int,default=0); ap.add_argument("--popol",default="sc1")
ap.add_argument("--bar",type=int,default=0); ap.add_argument("--sync",type=int,default=0)
A=ap.parse_args(); assert 4<=A.prek<=7
A.spol=A.spol.replace("_"," "); A.opol=A.opol.replace("_"," "); A.popol=A.popol.replace("_"," "); A.outpol=A.outpol.replace("_"," "); POL=A.pol; EPOL=A.epol; S=A.S; J0=24+S; NFULL=16*(8-S-A.NH); NPOOL=NFULL+32*A.NH; D=A.D; assert D==8 and 3<=A.LAH<=4
NAME=KNAME+"_kernel"
PSG,PSS=(14,18) if A.pslay else (15,14)
PS_OFF=0x100000
PO_OFF=0x200000
CN_OFF=0x300000
PP_OFF=0x380000
L_E=0; L_F=65536; L_W=131072; L_WP=L_W+16384; L_ST=L_WP+4096; L_P=L_ST+2048; L_FLAG=L_P+512; LDS_BYTES=L_FLAG+64
F_ER=0; F_WR=4; F_PROG=16; F_MB=32
SENT=-1; END=0xff; DONE=0xffff
vKoff=1; vLr=2; vLa=4; vFl=6; vSt=7
vT=8; vTmp=16; vQ=24; vQB=28; vBh=32; vBl=36; vAcc=40; vFr=56; vBuf=88; vPg=152; vTS=153; vSo=154
vT16=156; vOO=172; NV=180
vTA=24
sWave=3; sMem=32; sGrp=33; sHead=34; sK=40; sK1=41; sOff=42; sSet=43; sIdx=44; sRot=45
sNB=46; sLast=48; sOffN=49; sVA=50; sVB=52; sT=54
sM=60; sTS=68; sCap=72; sH=35; sRem=30; sNew=31; sXW=29; sA=24; sB=25
CUR=20; NXT=36
a=Asm()
CAP=f"s_sub_u32 s{sCap}, s{sCap}, 1\ns_cbranch_scc1 L_end"
def chunk_id(dst,k,mem=sMem):
    a(f"s_add_u32 s{dst}, s{k}, s{sRot}\ns_and_b32 s{dst}, s{dst}, 7")
    if A.latin:
        a(f"s_mul_i32 s{sT+5}, s{dst}, {A.latin}\ns_add_u32 s{sT+5}, s{sT+5}, s{mem}\ns_and_b32 s{sT+5}, s{sT+5}, 15\ns_lshl_b32 s{dst}, s{dst}, 4\ns_add_u32 s{dst}, s{dst}, s{sT+5}")
    else: a(f"s_lshl_b32 s{dst}, s{dst}, 4\ns_add_u32 s{dst}, s{dst}, s{mem}")
def halfoffs(off,h):
    a(f"s_add_u32 s{sA}, s{off}, {h*8192}\ns_xor_b32 s{sA}, s{sA}, s{sXW}\ns_xor_b32 s{sB}, s{sA}, 4096")
def load(slot,srd):
    r=vBuf+4*slot
    a(f"buffer_load_dwordx4 v[{r}:{r+3}], v{vKoff}, s[{srd}:{srd+3}], s{sB if slot&4 else sA} offen offset:{(slot&3)*1024} {POL}")
def issue(j):
    if j==0: halfoffs(sOff,1)
    if j==8: halfoffs(sOffN,0)
    load(j^8,CUR if j<8 else NXT)
def rotate():
    if D<16: a(f"s_mov_b32 s{CUR}, s{NXT}\ns_mov_b32 s{CUR+1}, s{NXT+1}\ns_mov_b32 s{sOff}, s{sOffN}")
uid=[0]
def lds_wait_ge(flag,val,tmpv=vTmp,sleep=1):
    uid[0]+=1; L=f"L_w{uid[0]}"
    a(f"{L}:\nds_read_b32 v{tmpv}, v{vFl} offset:{flag}\ns_waitcnt lgkmcnt(0)\nv_readfirstlane_b32 s{sT}, v{tmpv}")
    a(f"s_cmp_ge_u32 s{sT}, {val}\ns_cbranch_scc1 {L}_ok\ns_sleep {sleep}\n{CAP}\ns_branch {L}\n{L}_ok:")
def prog_wait_ge(val,t,sleep):
    uid[0]+=1; L=f"L_w{uid[0]}"
    a(f"{L}:\nds_read_b128 v[{t}:{t+3}], v{vFl} offset:{F_PROG}\ns_waitcnt lgkmcnt(0)\nv_min3_u32 v{t}, v{t}, v{t+1}, v{t+2}\nv_min_u32 v{t}, v{t}, v{t+3}\ns_nop 0\nv_readfirstlane_b32 s{sT}, v{t}")
    a(f"s_cmp_ge_u32 s{sT}, {val}\ns_cbranch_scc1 {L}_ok\ns_sleep {sleep}\n{CAP}\ns_branch {L}\n{L}_ok:")
def stamp(k,once=False):
    if A.diag!=3: return
    uid[0]+=1
    if once: a(f"s_cmp_lg_u32 s{sIdx}, 0\ns_cbranch_scc1 L_st{uid[0]}")
    a(f"s_memrealtime s[{sTS+2}:{sTS+3}]\ns_waitcnt lgkmcnt(0)\nv_writelane_b32 v{vTS}, s{sTS+2}, {k}")
    if once: a(f"L_st{uid[0]}:")
def half_progress(t):
    a(f"s_lshl_b32 s{sT+1}, s{sIdx}, 1\ns_add_u32 s{sT+1}, s{sT+1}, 1\nv_mov_b32 v{t}, s{sT+1}\nds_write_b32 v{vPg}, v{t}")
def progress(t):
    if A.diag==3: a(f"s_memrealtime s[{sTS+2}:{sTS+3}]\ns_waitcnt lgkmcnt(0)\ns_add_u32 m0, s{sIdx}, 8\ns_nop 0\nv_writelane_b32 v{vTS}, s{sTS+2}, m0")
    if A.diag==1: a(f"s_memrealtime s[{sTS+2}:{sTS+3}]\ns_waitcnt lgkmcnt(0)\ns_mov_b32 m0, s{sIdx}\ns_nop 0\nv_writelane_b32 v{vTS}, s{sTS+2}, m0")
    a(f"s_add_u32 s{sIdx}, s{sIdx}, 1\ns_lshl_b32 s{sT+1}, s{sIdx}, 1\nv_mov_b32 v{t}, s{sT+1}\nds_write_b32 v{vPg}, v{t}")

a(f"s_cmp_ge_u32 s2, 256\ns_cbranch_scc1 L_end")
a("s_load_dwordx8 s[4:11], s[0:1], 0\ns_load_dwordx8 s[12:19], s[0:1], 32")
if A.diag: a(f"s_memrealtime s[{sTS}:{sTS+1}]")
a(f"v_lshrrev_b32 v1, 6, v0\nv_and_b32 v0, 63, v0\nv_readfirstlane_b32 s{sWave}, v1")
a(f"s_and_b32 s{sMem}, s2, 15\ns_lshr_b32 s{sGrp}, s2, 4")
a(f"s_mov_b32 s{sRot}, "+("0" if A.rot=="none" else f"s{sGrp}"))
a(f"v_and_b32 v{vTmp}, 15, v0\nv_lshrrev_b32 v{vTmp+1}, 4, v0")
a(f"s_cmp_eq_u32 s{sWave}, 4\ns_cbranch_scc1 L_helper")
a(f"s_lshl_b32 s{sHead}, s{sGrp}, 3\ns_add_u32 s{sHead}, s{sHead}, s{sWave}")
a(f"v_lshlrev_b32 v{vTmp+2}, 4, v{vTmp}\nv_lshlrev_b32 v{vKoff}, 4, v0\ns_lshl_b32 s{sXW}, s{sWave}, {12 if A.xw else 20}\ns_and_b32 s{sXW}, s{sXW}, 0x3000")
a(f"s_mov_b32 s{sK}, 0")
chunk_id(sOff,sK); a(f"s_lshl_b32 s{sOff}, s{sOff}, 14")
halfoffs(sOff,0)
a(f"s_lshl_b32 s{sT}, s{sHead}, 21\ns_lshl_b32 s{sT+1}, s{sHead}, 8\ns_mov_b32 s22, {2<<20}\ns_mov_b32 s23, 0x20000")
a("s_waitcnt lgkmcnt(0)")
stamp(1)
a(f"s_add_u32 s20, s6, s{sT}\ns_addc_u32 s21, s7, 0\ns_add_u32 s4, s4, s{sT+1}\ns_addc_u32 s5, s5, 0")
for j in range(D):
    if j==A.qpos: a(f"global_load_dwordx4 v[{vQ}:{vQ+3}], v{vTmp+2}, s[4:5]")
    load(j,CUR)
a(f"global_load_dwordx4 v[{vQB}:{vQB+3}], v{vTmp+2}, s[4:5] offset:1024")
stamp(2)
a(f"v_mov_b32 v{vFl}, {L_FLAG}\ns_mov_b32 s{sCap}, 0x10000")
a(f"s_mov_b32 s{NXT}, s20\ns_mov_b32 s{NXT+1}, s21\ns_mov_b32 s{NXT+2}, {2<<20}\ns_mov_b32 s{NXT+3}, 0x20000")
a(f"s_add_u32 s{sNB}, s20, {8<<20}\ns_addc_u32 s{sNB+1}, s21, 0")
a(f"s_add_u32 s{sVA}, s8, s{sT}\ns_addc_u32 s{sVA+1}, s9, 0\ns_add_u32 s{sVB}, s{sVA}, {8<<20}\ns_addc_u32 s{sVB+1}, s{sVA+1}, 0")
a(f"v_bfe_u32 v{vTmp+2}, v0, 1, 3\nv_xor_b32 v{vTmp+2}, v{vTmp+2}, v{vTmp+1}\ns_lshr_b32 s{sT+2}, s{sXW}, 11\nv_xor_b32 v{vTmp+2}, s{sT+2}, v{vTmp+2}\nv_lshlrev_b32 v{vTmp+2}, 4, v{vTmp+2}")
a(f"v_lshl_add_u32 v{vLr}, v{vTmp}, 7, v{vTmp+2}\nv_xor_b32 v{vLr+1}, 64, v{vLr}")
a(f"s_lshl_b32 s{sT+2}, s{sWave}, 8\ns_add_u32 s{sT+2}, s{sT+2}, {L_ST}\nv_lshl_add_u32 v{vTmp+2}, v{vTmp}, 4, s{sT+2}\nv_lshl_add_u32 v{vSt}, v{vTmp+1}, 6, v{vTmp+2}")
a(f"v_lshlrev_b32 v{vTmp+2}, 5, v{vTmp}\nv_and_b32 v{vSo}, 16, v0\nv_add_u32 v{vSo}, v{vSo}, v{vTmp+2}\nv_lshrrev_b32 v{vTmp+2}, 5, v0\nv_lshl_add_u32 v{vSo}, v{vTmp+2}, 15, v{vSo}")
for x,mk in enumerate((0xAAAAAAAA,0xCCCCCCCC,0x000F000F)):
    a(f"s_mov_b32 s{sM+2*x}, {mk:#x}\ns_mov_b32 s{sM+2*x+1}, {mk:#x}")
a(f"s_lshl_b32 s{sT}, s{sHead}, 13\ns_lshl_b32 s{sT+1}, s{sMem}, 9\ns_add_u32 s{sT}, s{sT}, s{sT+1}")
a(f"s_add_u32 s{sT}, s{sT}, {PO_OFF}\ns_add_u32 s26, s18, s{sT}\ns_addc_u32 s27, s19, 0")
a(f"s_lshl_b32 s{sT}, s{sWave}, 2\ns_add_u32 s{sT}, s{sT}, {L_FLAG+F_PROG}\nv_mov_b32 v{vPg}, s{sT}")
for x in range(16): a(f"v_mov_b32 v{vAcc+x}, 0")
a(f"s_mov_b32 s{sSet}, 0\ns_mov_b32 s{sIdx}, 0\ns_mov_b32 s{sLast}, 0")
if A.bar: a("s_barrier")
if A.qpos>1: a(f"s_waitcnt vmcnt({D-A.qpos+1})")
stamp(3)
def stage2(b):
    t=vT16+8*b
    for j0 in range(2): a(f"v_permlane32_swap_b32 v{t+j0}, v{t+j0+4}\nv_permlane32_swap_b32 v{t+j0+2}, v{t+j0+6}")
    a("s_nop 0")
    for j0 in range(2): a(f"v_permlane16_swap_b32 v{t+j0}, v{t+j0+2}\nv_permlane16_swap_b32 v{t+j0+4}, v{t+j0+6}")
    a("s_nop 0")
    for p in range(4):
        t0=t+(p>>1)+4*(p&1); t1=t0+2
        a(f"v_cvt_pk_bf16_f32 v{vBh+p}, v{t0}, v{t1}")
        a(f"v_lshlrev_b32 v{vTmp}, 16, v{vBh+p}\nv_and_b32 v{vTmp+1}, 0xffff0000, v{vBh+p}")
        a(f"v_sub_f32 v{vTmp}, v{t0}, v{vTmp}\nv_sub_f32 v{vTmp+1}, v{t1}, v{vTmp+1}")
        a(f"v_cvt_pk_bf16_f32 v{vBl+p}, v{vTmp}, v{vTmp+1}")
    a("s_waitcnt lgkmcnt(0)\ns_nop 0" if b==0 else "s_nop 1")
    for B in (vBh,vBl):
        for rt in range(4):
            r=vFr+16*b+4*rt; c=vAcc+4*rt
            a(f"v_mfma_f32_16x16x32_bf16 v[{c}:{c+3}], v[{r}:{r+3}], v[{B}:{B+3}], v[{c}:{c+3}]")
a("L_kloop:")
a(f"s_add_u32 s{sK1}, s{sK}, 1\ns_and_b32 s{sK1}, s{sK1}, 7\ns_cbranch_scc1 L_ndk\ns_mov_b32 s{NXT}, s{sNB}\ns_mov_b32 s{NXT+1}, s{sNB+1}\nL_ndk:")
chunk_id(sOffN,sK1); a(f"s_lshl_b32 s{sOffN}, s{sOffN}, 14")
a(f"s_lshl_b32 s{sT+1}, s{sK}, 13\nv_add_u32 v{vLa}, s{sT+1}, v{vLr}\nv_add_u32 v{vLa+1}, s{sT+1}, v{vLr+1}")
for j in range(16):
    r=vBuf+4*j
    a(f"s_waitcnt vmcnt({D-1})")
    if j==0: stamp(4,True)
    if j==15: stamp(7,True)
    a(f"v_dot2_f32_bf16 v{vT16+j}, v{r}, v{vQ}, 0")
    for x in range(1,4): a(f"v_dot2_f32_bf16 v{vT16+j}, v{r+x}, v{vQ+x}, v{vT16+j}")
    issue(j)
    if j==A.ej:
        stamp(5,True)
        if A.bar==0: a(f"s_cmp_lg_u32 s{sIdx}, 0\ns_cbranch_scc1 L_nobar\ns_barrier\nL_nobar:")
        a(f"s_add_u32 s{sT+1}, s{sK}, 1")
        lds_wait_ge(F_ER,f"s{sT+1}")
        stamp(6,True)
        for bb in range(2):
            for rt in range(4):
                rr=vFr+16*bb+4*rt
                a(f"ds_read_b128 v[{rr}:{rr+3}], v{vLa+bb} offset:{rt*2048}")
    if j==A.ej+1: stage2(0)
a("s_nop 2")
stage2(1)
rotate()
a(f"s_cmp_lg_u32 s{sIdx}, {A.preat}\ns_cbranch_scc1 L_nopre")
if not A.nopre:
    a(f"global_load_dwordx4 v[{vOO}:{vOO+3}], v{vSo}, s[26:27] {A.opol}")
a("L_nopre:")
progress(vTmp)
if A.sync:
    uid[0]+=1
    a(f"s_and_b32 s{sT+2}, s{sIdx}, {A.sync-1}\ns_cbranch_scc1 L_sy{uid[0]}\ns_lshl_b32 s{sT+2}, s{sIdx}, 1"); u=uid[0]
    prog_wait_ge(f"s{sT+2}",vTmp+4,0)
    a(f"L_sy{u}:")
a(f"s_mov_b32 s{sK}, s{sK1}\ns_cmp_lg_u32 s{sK}, 0\ns_cbranch_scc1 L_kloop")
a("s_nop 4")
for sh in (8,4,2,1):
    for x in range(16): a(f"v_add_f32_dpp v{vAcc+x}, v{vAcc+x}, v{vAcc+x} row_ror:{sh} row_mask:0xf bank_mask:0xf")
for x in range(4):
    a(f"v_cndmask_b32 v{vAcc+x}, v{vAcc+x}, v{vAcc+4+x}, s[{sM}:{sM+1}]\nv_cndmask_b32 v{vAcc+8+x}, v{vAcc+8+x}, v{vAcc+12+x}, s[{sM}:{sM+1}]")
for x in range(4): a(f"v_cndmask_b32 v{vTmp+x}, v{vAcc+x}, v{vAcc+8+x}, s[{sM+2}:{sM+3}]")
a(f"s_mov_b64 exec, s[{sM+4}:{sM+5}]\nds_write_b128 v{vSt}, v[{vTmp}:{vTmp+3}]\ns_mov_b64 exec, -1")
for x in range(16): a(f"v_mov_b32 v{vAcc+x}, 0")
for x in range(4): a(f"v_mov_b32 v{vQ+x}, v{vQB+x}")
a(f"v_add_u32 v{vSt}, 1024, v{vSt}\ns_mov_b32 s{sNB}, s{sVA}\ns_mov_b32 s{sNB+1}, s{sVA+1}\ns_waitcnt lgkmcnt(0)")
half_progress(vTmp+4)
a(f"s_add_u32 s{sSet}, s{sSet}, 1\ns_cmp_lt_u32 s{sSet}, 2\ns_cbranch_scc1 L_kloop")
a(f"s_lshl_b32 s{sT}, s{sWave}, 8\ns_add_u32 s{sT}, s{sT}, {L_W}\nv_lshrrev_b32 v{vTmp+5}, 4, v0\nv_lshl_add_u32 v{vLr}, v{vTmp+5}, 6, s{sT}\nv_add_u32 v{vLr+1}, {L_WP-L_W}, v{vLr}")
for x in range(8): a(f"v_mov_b32 v{vT+x}, 0")
for x in range(4): a(f"v_not_b32 v{vOO+x}, v{vOO+x}")
if A.diag==1: a(f"s_mov_b32 s81, s{sCap}")
lds_wait_ge(F_WR,1,tmpv=vBl)
if A.diag==1: a(f"s_mov_b32 s82, s{sCap}\ns_mov_b32 s83, 0\ns_mov_b32 s84, 0")
a(f"s_lshr_b32 s{sNB}, s{sXW}, 8\ns_mov_b32 s{sH}, 32\ns_mov_b32 s{sRem}, 1\nv_mov_b32 v{vLa}, v{vLr}")
def halfstep(b):
    W=vAcc+8*b
    a(f"v_xor_b32 v{vBl+2}, s{sNB}, v{vLa}\nv_xor_b32 v{vBl+3}, 16, v{vBl+2}\nds_read_b128 v[{W}:{W+3}], v{vBl+2}\nds_read_b128 v[{W+4}:{W+7}], v{vBl+3}")
    a(f"s_cmp_eq_u32 s{sRem}, 0\ns_cbranch_scc1 L_vi{b}")
    a(f"s_add_u32 s{sOff}, s{sOff}, 8192\nv_add_u32 v{vLa}, 32, v{vLa}\ns_mov_b32 s{sRem}, 0\ns_mov_b32 s{sNew}, 0\ns_branch L_vgo{b}")
    a(f"L_vi{b}:\ns_add_u32 s{sIdx}, s{sIdx}, 1\ns_cmp_ge_u32 s{sIdx}, {J0}\ns_cbranch_scc1 L_vmb{b}")
    a(f"s_mov_b32 s{sNew}, 0\ns_and_b32 s{sK1}, s{sIdx}, 7\ns_cbranch_scc1 L_ndv{b}\ns_mov_b32 s{NXT}, s{sVB}\ns_mov_b32 s{NXT+1}, s{sVB+1}\ns_mov_b32 s{sNew}, 2\nL_ndv{b}:")
    chunk_id(sOff,sK1)
    a(f"s_lshl_b32 s{sOff}, s{sOff}, 14\nv_add_u32 v{vLa}, {1024-32}, v{vLa}\ns_mov_b32 s{sRem}, 1\ns_branch L_vgo{b}")
    a(f"L_vmb{b}:\ns_and_b32 s{sT+1}, s{sIdx}, 3\ns_lshl_b32 s{sT+2}, s{sT+1}, 2\nv_add_u32 v{vLa+1}, s{sT+2}, v{vFl}\ns_lshl_b32 s{sT+1}, s{sT+1}, 10")
    if A.diag==1: a(f"s_cmp_eq_u32 s{sIdx}, {J0}\ns_cselect_b32 s83, s{sCap}, s83\ns_add_u32 s84, s84, s{sCap}")
    a(f"L_vmbp{b}:\nds_read_b32 v{vBl}, v{vLa+1} offset:{F_MB}\ns_waitcnt lgkmcnt(0)\nv_readfirstlane_b32 s{sOff}, v{vBl}\ns_lshr_b32 s{sT}, s{sOff}, 16\ns_cmp_eq_u32 s{sT}, s{sIdx}\ns_cbranch_scc1 L_vmbok{b}\ns_sleep 1\n{CAP}\ns_branch L_vmbp{b}\nL_vmbok{b}:")
    if A.diag==1: a(f"s_sub_u32 s84, s84, s{sCap}")
    a(f"s_bfe_u32 s{sRem}, s{sOff}, {9|(1<<16)}\ns_bfe_u32 s{sT+2}, s{sOff}, {8|(1<<16)}\ns_and_b32 s{sOff}, s{sOff}, 0xff\ns_cmp_eq_u32 s{sOff}, {END}\ns_cselect_b32 s{NXT+2}, 0, s{NXT+2}\ns_cselect_b32 s{sLast}, 1, 0")
    a(f"s_lshl_b32 s{sOff}, s{sOff}, 1\ns_add_u32 s{sOff}, s{sOff}, s{sT+2}\ns_lshl_b32 s{sOff}, s{sOff}, 13\ns_lshl_b32 s{sT+2}, s{sT+2}, 5\ns_add_u32 s{sT+1}, s{sT+1}, s{sT+2}\nv_add_u32 v{vLa}, s{sT+1}, v{vLr+1}\ns_mov_b32 s{sNew}, s{sIdx}")
    a(f"L_vgo{b}:"); halfoffs(sOff,0)
    for jj in range(8):
        j=8*b+jj; r=vBuf+4*j; n=vBuf+4*(j^8)
        a("s_waitcnt vmcnt(7)" + (" lgkmcnt(0)" if jj==0 else ""))
        for x in range(4):
            a(f"v_lshlrev_b32 v{vTmp+2*x}, 16, v{r+x}\nv_and_b32 v{vTmp+2*x+1}, 0xffff0000, v{r+x}")
        load(j^8,NXT)
        for x in range(8): a(f"v_fmac_f32 v{vT+x}, v{W+jj}, v{vTmp+x}")
    if A.diag==1 and b==1: a(f"s_memrealtime s[{sTS+2}:{sTS+3}]\ns_lshr_b32 m0, s{sH}, 1\ns_waitcnt lgkmcnt(0)\nv_writelane_b32 v{vTS}, s{sTS+2}, m0")
    a(f"s_add_u32 s{sH}, s{sH}, 1\nv_mov_b32 v{vBl+1}, s{sH}\nds_write_b32 v{vPg}, v{vBl+1}")
    a(f"s_cmp_lg_u32 s{sLast}, 0\ns_cbranch_scc1 L_vdone")
    if A.sync and b==1:
        uid[0]+=1; u=uid[0]
        a(f"s_and_b32 s{sT+2}, s{sH}, {2*A.sync-1}\ns_cbranch_scc1 L_sy{u}")
        prog_wait_ge(f"s{sH}",vTmp+4,0)
        a(f"L_sy{u}:")
    a(f"s_cmp_eq_u32 s{sNew}, 0\ns_cbranch_scc1 L_vn{b}\ns_cmp_lg_u32 s{sNew}, 2\ns_cbranch_scc1 L_vna{b}")
    for x in range(8): a(f"v_mov_b32 v{vTA+x}, v{vT+x}\nv_mov_b32 v{vT+x}, 0")
    a(f"L_vna{b}:")
    lds_wait_ge(F_WR,f"s{sNew}",tmpv=vBl)
    a(f"L_vn{b}:")
a("L_vloop:")
halfstep(0); halfstep(1)
a("s_branch L_vloop\nL_vdone:")
for x in range(4): a(f"v_permlane16_swap_b32 v{vTA+x}, v{vTA+4+x}")
for x in range(4): a(f"v_permlane16_swap_b32 v{vT+x}, v{vT+4+x}")
for x in range(4): a(f"v_add_f32 v{vTA+x}, v{vTA+x}, v{vTA+4+x}")
for x in range(4): a(f"v_add_f32 v{vT+x}, v{vT+x}, v{vT+4+x}")
a(f"v_mov_b32 v{vTmp}, {DONE}\ns_nop 0")
for x in range(4): a(f"v_permlane32_swap_b32 v{vTA+x}, v{vT+x}")
for x in range(4): a(f"v_add_f32 v{vT+x}, v{vT+x}, v{vTA+x}")
for x in range(4): a(f"v_bfi_b32 v{vBh+x}, 1, v{vOO+x}, v{vT+x}")
if A.nopo==2: a("s_mov_b32 exec_hi, 0")
if A.nopo==3: a("s_mov_b64 exec, 0xffff")
if A.nopo!=1: a(f"global_store_dwordx4 v{vSo}, v[{vBh}:{vBh+3}], s[26:27] {A.popol}")
if A.nopo>=2: a("s_mov_b64 exec, -1")
a(f"ds_write_b32 v{vPg}, v{vTmp}")
if A.diag in (1,3):
    a(f"s_memrealtime s[{sTS+2}:{sTS+3}]\ns_lshl_b32 s{sT}, s2, 2\ns_add_u32 s{sT}, s{sT}, s{sWave}\ns_lshl_b32 s{sT}, s{sT}, 5\ns_getreg_b32 s{sT+1}, hwreg(HW_REG_XCC_ID)\ns_waitcnt lgkmcnt(0)")
    a(f"v_mov_b32 v8, s{sTS}\nv_mov_b32 v9, s{sTS+1}\nv_mov_b32 v10, s{sTS+2}\nv_mov_b32 v11, s{sTS+3}\nv_mov_b32 v12, s{sT+1}\ns_add_u32 s{sH}, s{sH}, 1\ns_lshr_b32 s{sH}, s{sH}, 1\nv_mov_b32 v13, s{sH}\ns_sub_u32 s85, 0x10000, s81\ns_sub_u32 s81, s81, s82\ns_lshl_b32 s81, s81, 16\ns_or_b32 s85, s85, s81\nv_mov_b32 v14, s85\ns_sub_u32 s82, s82, s83\ns_sub_u32 s83, s83, s{sCap}\ns_sub_u32 s83, s83, s84\ns_lshl_b32 s83, s83, 10\ns_lshl_b32 s84, s84, 20\ns_or_b32 s82, s82, s83\ns_or_b32 s82, s82, s84\nv_mov_b32 v15, s82\nv_mov_b32 v7, s{sT}")
    a(f"s_lshl_b32 s{sT}, s{sT}, 3\ns_add_u32 s{sT}, s{sT}, 0x1000000\nv_lshl_add_u32 v16, v0, 2, s{sT}\nglobal_store_dword v16, v{vTS}, s[18:19]")
    a("s_mov_b64 exec, 1\nglobal_store_dwordx4 v7, v[8:11], s[18:19]\nglobal_store_dwordx4 v7, v[12:15], s[18:19] offset:16")
a("s_endpgm")
a("L_helper:")
vE0=1; vE1=2; vLo=3; vPw=4; vPr=5; vWw=7; vTr=8; vH=12; vP=24; vW=32; vA=48; vL=80; vOS=112; vTc=128; vWc=132; vTk=133; vZ=134; vOne=135; vL8=136; vGs=137; vGo=138; vOwn=172
vOP=140
sLB=49; sRed=50; sHd=51; sOwn=52
a(f"v_mov_b32 v{vFl}, {L_FLAG}")
for x in range(4): a(f"v_mov_b32 v{vH+x}, 0")
a(f"ds_write_b128 v{vFl}, v[{vH}:{vH+3}]\nds_write_b128 v{vFl}, v[{vH}:{vH+3}] offset:16\nds_write_b128 v{vFl}, v[{vH}:{vH+3}] offset:32")
a(f"v_and_b32 v{vTmp+4}, 7, v0\nv_lshrrev_b32 v{vTmp+5}, 3, v0\nv_lshlrev_b32 v{vTmp+5}, 14, v{vTmp+5}\nv_xor_b32 v{vTmp+6}, v{vTmp+1}, v{vTmp+4}")
a(f"v_lshl_add_u32 v{vE0}, v{vTmp+6}, 4, v{vTmp+5}")
a(f"v_xor_b32 v{vTmp+6}, 4, v{vTmp+6}\nv_lshl_add_u32 v{vE1}, v{vTmp+6}, 4, v{vTmp+5}\nv_add_u32 v{vE1}, {8*16384}, v{vE1}")
a(f"s_mov_b32 s22, {1<<20}\ns_mov_b32 s23, 0x20000\ns_mov_b32 s{sK}, 0\ns_mov_b32 s{sLB}, {L_E}\ns_waitcnt lgkmcnt(0)\ns_mov_b32 s20, s10\ns_mov_b32 s21, s11")
def dma(pol,pool=False):
    a(f"s_lshl_b32 s{sOff}, s{sOff}, 7")
    for rg in range(4):
        for e in range(2):
            a(f"s_add_u32 m0, s{sLB}, {rg*2048+e*1024}\ns_add_u32 s{sT}, s{sOff}, {rg*16*16384}")
            if not (A.noslab and pol==EPOL and not pool): a(f"buffer_load_dwordx4 v{vE0+e}, s[20:23], s{sT} offen {pol} lds")
def dma_next():
    chunk_id(sOff,sK)
    if A.slabtest==1: a(f"s_and_b32 s{sOff}, s{sOff}, 0x70")
    if A.slabtest==2: a(f"s_mov_b32 s{sOff}, 0")
    if A.slabtest==3: a(f"s_lshl_b32 s{sOff}, s{sMem}, 3\ns_add_u32 s{sOff}, s{sOff}, s{sK}")
    if A.pace:
        a(f"s_lshl_b32 s{sT+3}, s{sLB}, 0\ns_lshr_b32 s{sT+3}, s{sT+3}, 13\ns_mul_i32 s{sT+3}, s{sT+3}, {A.pace}\ns_lshr_b32 s{sT+3}, s{sT+3}, 2\ns_max_u32 s{sT+3}, s{sT+3}, 3\ns_sub_u32 s{sT+3}, s{sT+3}, 3")
        prog_wait_ge(f"s{sT+3}",vH,4)
    dma(EPOL); a(f"s_add_u32 s{sK}, s{sK}, 1\ns_add_u32 s{sLB}, s{sLB}, 8192")
def setflag(flag,val):
    a(f"v_mov_b32 v{vH}, {val}\nds_write_b32 v{vFl}, v{vH} offset:{flag}")
def efpre():
    a(f"s_and_b32 s{sT}, s2, 127\ns_lshl_b32 s{sT}, s{sT}, 13\nv_lshl_add_u32 v{vH+1}, v0, 7, s{sT}\ns_cmp_ge_u32 s2, 128\ns_cselect_b32 s{sT+2}, s12, s10\ns_cselect_b32 s{sT+3}, s13, s11")
    a(f"global_load_dword v139, v{vH+1}, s[{sT+2}:{sT+3}] {A.pfpol}")
if A.efpre==1: efpre()
if A.bar==2: a("s_barrier")
dma_next()
if A.bar==1: a("s_barrier")
if A.efpre==2: efpre()
dma_next()
if A.efpre==3: efpre()
a(f"s_mov_b32 s{sCap}, 0x10000\nv_lshlrev_b32 v{vLo}, 4, v0\nv_lshlrev_b32 v{vL8}, 3, v0\nv_mov_b32 v{vZ}, 0\nv_mov_b32 v{vOne}, 1")
a(f"s_lshl_b32 s{sHd}, s{sGrp}, 3\ns_add_u32 s{sHd}, s{sHd}, s{sMem}\ns_lshr_b32 s{sRed}, s{sMem}, 2")
a(f"s_lshl_b32 s{sT}, s{sGrp}, {PSG}\ns_add_u32 s{sT+1}, s{sT}, {PS_OFF}\ns_add_u32 s24, s18, s{sT+1}\ns_addc_u32 s25, s19, 0\ns_mov_b32 s26, {(1<<PSS)+16384}\ns_mov_b32 s27, 0x20000")
a(f"s_lshl_b32 s{sT}, s{sHd}, 13\ns_add_u32 s{sT}, s{sT}, {PO_OFF}\ns_add_u32 s28, s18, s{sT}\ns_addc_u32 s29, s19, 0\ns_mov_b32 s30, 8192\ns_mov_b32 s31, 0x20000")
a(f"s_lshl_b32 s{sT}, s{sHd}, 7\ns_add_u32 s{sT}, s{sT}, {PP_OFF}\ns_add_u32 s76, s18, s{sT}\ns_addc_u32 s77, s19, 0")
a(f"s_mul_i32 s{sT}, s{sGrp}, {A.cstride}\ns_add_u32 s{sT}, s{sT}, {CN_OFF}\ns_add_u32 s74, s18, s{sT}\ns_addc_u32 s75, s19, 0\ns_mov_b32 s78, 4096")
a(f"s_lshl_b32 s{sT}, s{sGrp}, 4\ns_add_u32 s16, s16, s{sT}\ns_addc_u32 s17, s17, 0")
a("s_waitcnt vmcnt(%d)"%(9 if A.efpre>=2 else 8)); setflag(F_ER,1)
if A.bar==0:
    a("s_waitcnt lgkmcnt(0)\ns_barrier\ns_waitcnt vmcnt(0)"); setflag(F_ER,2)
    dma_next()
else:
    dma_next()
    a("s_waitcnt vmcnt(8)"); setflag(F_ER,2)
a(f"s_and_b32 s{sT}, s{sMem}, 3\ns_lshl_b32 s{sT}, s{sT}, 8\nv_and_b32 v{vGo}, 15, v0\nv_lshl_add_u32 v{vGo}, v{vGo}, 4, s{sT}\nv_lshl_add_u32 v{vGo}, v{vTmp+1}, 10, v{vGo}")
a(f"v_mov_b32 v{vW}, {SENT}\nv_mov_b32 v{vW+1}, {SENT}\ns_lshl_b32 s{sOwn}, s{sMem}, 10\ns_add_u32 s{sT+1}, s{sOwn}, {1<<PSS}")
a("L_he:")
dma_next()
a(f"s_waitcnt vmcnt(8)\ns_sub_u32 s{sT}, s{sK}, 1"); setflag(F_ER,f"s{sT}")
a(f"s_cmp_lg_u32 s{sK}, {A.prek}\ns_cbranch_scc1 L_hnp")
if not A.nopre:
    a(f"buffer_load_dwordx4 v[{vOwn}:{vOwn+3}], v{vLo}, s[24:27], s{sOwn} offen {A.opol}\nbuffer_load_dwordx4 v[{vOwn+4}:{vOwn+7}], v{vLo}, s[24:27], s{sT+1} offen {A.opol}")
a(f"s_cmp_ge_u32 s{sMem}, 8\ns_cbranch_scc1 L_hnp")
if not A.nopre:
    for t in range(4): a(f"s_lshl_b32 s{sT+2}, s{sRed}, {PSS}\ns_add_u32 s{sT+2}, s{sT+2}, {t*4096}\nbuffer_load_dwordx4 v[{vOS+4*t}:{vOS+4*t+3}], v{vGo}, s[24:27], s{sT+2} offen {A.opol}")
    for t in range(8): a(f"buffer_load_dwordx4 v[{vOP+4*t}:{vOP+4*t+3}], v{vLo}, s[28:31], {'0' if t<4 else 's78'} offen offset:{(t%4)*1024} {A.opol}")
a(f"s_mov_b64 exec, 0xffff\nglobal_store_dwordx2 v{vL8}, v[{vW}:{vW+1}], s[76:77] sc1\ns_mov_b64 exec, 1")
a(f"s_cmp_lg_u32 s{sMem}, 0\ns_cbranch_scc1 L_hnz\nglobal_store_dword v{vZ}, v{vZ}, s[74:75] sc1\nL_hnz:\ns_mov_b64 exec, -1")
a("L_hnp:")
a(f"s_cmp_lg_u32 s{sK}, {A.prek+1}\ns_cbranch_scc1 L_hnq\ns_cmp_ge_u32 s{sMem}, 8\ns_cbranch_scc1 L_hnq")
a(f"s_mov_b64 exec, 1\nglobal_atomic_add v{vZ}, v{vOne}, s[16:17] {A.dpol}\ns_mov_b64 exec, -1\nL_hnq:")
a(f"s_cmp_lt_u32 s{sK}, 8\ns_cbranch_scc1 L_he")
a(f"s_mov_b32 s20, s12\ns_mov_b32 s21, s13\ns_mov_b32 s{sK}, 0")
dma_next()
a("s_waitcnt vmcnt(8)"); setflag(F_ER,8)
for x in range(A.fdepth-2): dma_next()
a("L_hf:")
dma_next()
a(f"s_waitcnt vmcnt({8*(A.fdepth-1)})\ns_cmp_lt_u32 s{sK}, 8\ns_cbranch_scc1 L_hf")
a(f"L_hinit:\nglobal_load_dword v{vH}, v{vZ}, s[16:17] sc1\ns_waitcnt vmcnt(0)\nv_readfirstlane_b32 s{sT}, v{vH}\ns_cmp_ge_u32 s{sT}, 8\ns_cbranch_scc1 L_hinit_ok\ns_sleep 8\n{CAP}\ns_branch L_hinit\nL_hinit_ok:")
a(f"v_bfe_u32 v{vTmp+2}, v0, 3, 1\nv_bfe_u32 v{vTmp+3}, v0, 4, 1\nv_lshlrev_b32 v{vTmp+3}, 2, v{vTmp+3}\nv_or_b32 v{vTmp+2}, v{vTmp+2}, v{vTmp+3}")
a(f"v_and_b32 v{vTmp+3}, 3, v0\nv_lshlrev_b32 v{vTmp+3}, 1, v{vTmp+3}\nv_xor_b32 v{vTmp+2}, v{vTmp+2}, v{vTmp+3}\nv_lshlrev_b32 v{vTmp+2}, 4, v{vTmp+2}")
a(f"v_bfe_u32 v{vTmp+3}, v0, 2, 2\nv_lshl_add_u32 v{vTmp+3}, v{vTmp+1}, 3, v{vTmp+3}\nv_lshl_add_u32 v{vTr}, v{vTmp+3}, 7, v{vTmp+2}")
a(f"v_xor_b32 v{vTr+1}, 16, v{vTr}\nv_xor_b32 v{vTr+2}, 32, v{vTr}\nv_add_u32 v{vTr+2}, 512, v{vTr+2}\nv_xor_b32 v{vTr+3}, 16, v{vTr+2}")
a(f"v_and_b32 v{vPw}, 3, v0\nv_lshlrev_b32 v{vPw}, 5, v{vPw}\nv_bfe_u32 v{vPr}, v0, 2, 2\nv_lshl_add_u32 v{vPw}, v{vPr}, 3, v{vPw}\nv_lshl_add_u32 v{vPw}, v{vTmp+1}, 7, v{vPw}\nv_add_u32 v{vPw}, {L_P}, v{vPw}")
a(f"v_and_b32 v{vPr}, 3, v0\nv_lshlrev_b32 v{vPr}, 7, v{vPr}\nv_lshl_add_u32 v{vPr}, v{vTmp+1}, 4, v{vPr}\nv_add_u32 v{vPr}, {L_P}, v{vPr}")
a(f"v_and_b32 v{vWw}, 3, v0\nv_lshlrev_b32 v{vWw}, 8, v{vWw}\nv_lshl_add_u32 v{vWw}, v{vTmp+1}, 4, v{vWw}")
a(f"s_mov_b32 s{sM}, 0x000f000f\ns_mov_b32 s{sM+1}, 0x000f000f\ns_mov_b32 s{sSet}, 0")
a(f"s_lshl_b32 s{sT}, s{sGrp}, 10\ns_add_u32 s{sT}, s{sT}, {PP_OFF}\ns_add_u32 s{sM+2}, s18, s{sT}\ns_addc_u32 s{sM+3}, s19, 0")
def wcompute():
    for nt in range(4):
        for kt in range(2):
            for h in range(2):
                r=vA+8*nt+4*kt+2*h
                a(f"ds_read_b64_tr_b16 v[{r}:{r+1}], v{vTc+2*h+(nt>>1)} offset:{kt*4096+(nt&1)*8}")
    for nt in range(4):
        a(f"s_waitcnt lgkmcnt({12-4*nt})")
        c=vW+4*nt; r=vA+8*nt
        a(f"v_mfma_f32_16x16x32_bf16 v[{c}:{c+3}], v[{r}:{r+3}], v[{vP}:{vP+3}], 0")
        a(f"v_mfma_f32_16x16x32_bf16 v[{c}:{c+3}], v[{r+4}:{r+7}], v[{vP+4}:{vP+7}], v[{c}:{c+3}]")
    a(f"s_nop 7\ns_mov_b64 exec, s[{sM}:{sM+1}]")
    for q in range(4):
        for nt in (0,2): a(f"ds_write2_b32 v{vWc}, v{vW+4*nt+q}, v{vW+4*nt+4+q} offset0:{q*16+nt} offset1:{q*16+nt+1}")
    a("s_mov_b64 exec, -1\ns_waitcnt lgkmcnt(0)")
def tagcheck(n,new,old,L,sleep):
    a(f"v_xor_b32 v{vH}, v{new}, v{old}")
    for x in range(1,n): a(f"v_bitop3_b32 v{vH}, v{vH}, v{new+x}, v{old+x} bitop3:0x60")
    a(f"v_and_b32 v{vH}, 1, v{vH}\nv_cmp_eq_u32 vcc, 0, v{vH}\ns_nop 4\ns_cbranch_vccz {L}_ok\ns_sleep {sleep}\n{CAP}\ns_branch {L}\n{L}_ok:")
    for x in range(n): a(f"v_and_b32 v{new+x}, -2, v{new+x}")
a(f"v_add_u32 v{vGs}, {L_ST}, v{vLo}")
for x in range(8): a(f"v_not_b32 v{vOwn+x}, v{vOwn+x}")
a("L_hset:")
a(f"s_lshl_b32 s{sIdx}, s{sSet}, 4\ns_add_u32 s{sIdx}, s{sIdx}, 17")
prog_wait_ge(f"s{sIdx}",vH,4)
a(f"ds_read_b128 v[{vL}:{vL+3}], v{vGs}\ns_lshl_b32 s{sK1}, s{sSet}, {PSS}\ns_add_u32 s{sT+1}, s{sOwn}, s{sK1}\ns_waitcnt lgkmcnt(0)")
for x in range(4): a(f"v_bfi_b32 v{vL+x}, 1, v{vOwn+x}, v{vL+x}")
if not A.nopub: a(f"buffer_store_dwordx4 v[{vL}:{vL+3}], v{vLo}, s[24:27], s{sT+1} offen {A.spol}")
for x in range(4): a(f"v_mov_b32 v{vOwn+x}, v{vOwn+4+x}")
a(f"v_add_u32 v{vGs}, 1024, v{vGs}")
a(f"s_cmp_lg_u32 s{sRed}, s{sSet}\ns_cbranch_scc1 L_hcons")
a(f"s_cmp_eq_u32 s{sSet}, 0\ns_cselect_b32 s{sIdx}, {A.trigRA}, {A.trigRB}")
prog_wait_ge(f"s{sIdx}",vH,8)
a("L_hpoll:")
for t in range(4): a(f"s_add_u32 s{sT+1}, s{sK1}, {t*4096}\nbuffer_load_dwordx4 v[{vL+4*t}:{vL+4*t+3}], v{vGo}, s[24:27], s{sT+1} offen sc1")
a("s_waitcnt vmcnt(0)")
if not (A.nopub or A.nopre): tagcheck(16,vL,vOS,"L_hpoll",A.rsleep)
for t in range(1,4):
    for x in range(4): a(f"v_add_f32 v{vL+x}, v{vL+x}, v{vL+4*t+x}")
for swap in ("v_permlane16_swap_b32","v_permlane32_swap_b32"):
    for x in range(4): a(f"v_mov_b32 v{vL+4+x}, v{vL+x}")
    a("s_nop 0")
    for x in range(4): a(f"{swap} v{vL+x}, v{vL+4+x}")
    for x in range(4): a(f"v_add_f32 v{vL+x}, v{vL+x}, v{vL+4+x}")
X=vL; T=vH
for x in range(4):
    a(f"v_cvt_pk_bf16_f32 v{X+x}, v{X+x}, v{X+x}\nv_and_b32 v{X+x}, 0xffff0000, v{X+x}\nv_mul_f32 v{X+x}, 0x3db504f3, v{X+x}")
    a(f"v_cvt_pk_bf16_f32 v{X+x}, v{X+x}, v{X+x}\nv_and_b32 v{X+x}, 0xffff0000, v{X+x}")
a(f"v_max3_f32 v{T}, v{X}, v{X+1}, v{X+2}\nv_max_f32 v{T}, v{T}, v{X+3}")
for sh in (8,4,2,1): a(f"s_nop 1\nv_max_f32_dpp v{T}, v{T}, v{T} row_ror:{sh} row_mask:0xf bank_mask:0xf")
for x in range(4): a(f"v_sub_f32 v{X+x}, v{X+x}, v{T}\nv_mul_f32 v{X+x}, 0x3fb8aa3b, v{X+x}\nv_exp_f32 v{X+x}, v{X+x}")
a(f"s_nop 0\nv_add_f32 v{T}, v{X}, v{X+1}\nv_add_f32 v{T+1}, v{X+2}, v{X+3}\nv_add_f32 v{T}, v{T}, v{T+1}")
for sh in (8,4,2,1): a(f"s_nop 1\nv_add_f32_dpp v{T}, v{T}, v{T} row_ror:{sh} row_mask:0xf bank_mask:0xf")
a(f"v_rcp_f32 v{T}, v{T}\nv_mov_b32 v{T+1}, 0x7fc07fc0")
for x in range(4): a(f"v_mul_f32 v{X+x}, v{X+x}, v{T}")
a(f"v_cvt_pk_bf16_f32 v{T+2}, v{X}, v{X+1}\nv_cvt_pk_bf16_f32 v{T+3}, v{X+2}, v{X+3}")
for x in (2,3): a(f"v_cmp_eq_u32 vcc, {SENT}, v{T+x}\ns_nop 1\nv_cndmask_b32 v{T+x}, v{T+x}, v{T+1}, vcc")
a(f"s_mov_b64 exec, 0xffff\nglobal_store_dwordx2 v{vL8}, v[{T+2}:{T+3}], s[76:77] sc1\ns_mov_b64 exec, -1")
a("L_hcons:")
a(f"s_cmp_eq_u32 s{sSet}, 0\ns_cselect_b32 s{sIdx}, {A.trigA}, {A.trigB}")
prog_wait_ge(f"s{sIdx}",vH,8)
a(f"L_hpp:\nglobal_load_dwordx2 v[{vL}:{vL+1}], v{vL8}, s[{sM+2}:{sM+3}] sc1\ns_waitcnt vmcnt(0)\nv_max_u32 v{vH}, v{vL}, v{vL+1}\nv_cmp_eq_u32 vcc, {SENT}, v{vH}\ns_nop 4\ns_cbranch_vccz L_hpp_ok\ns_sleep 8\n{CAP}\ns_branch L_hpp\nL_hpp_ok:")
a(f"ds_write_b64 v{vPw}, v[{vL}:{vL+1}]\ns_waitcnt lgkmcnt(0)")
a(f"ds_read_b128 v[{vP}:{vP+3}], v{vPr}\nds_read_b128 v[{vP+4}:{vP+7}], v{vPr} offset:64\ns_waitcnt lgkmcnt(0)")
for x in range(4): a(f"v_add_u32 v{vTc+x}, {L_F}, v{vTr+x}")
a(f"s_lshl_b32 s{sT}, s{sSet}, 13\ns_add_u32 s{sT}, s{sT}, {L_W}\nv_add_u32 v{vWc}, s{sT}, v{vWw}")
a(f"s_cmp_eq_u32 s{sSet}, 0\ns_cselect_b32 s{sK}, 8, {S}")
a("L_hw:")
wcompute()
for x in range(4): a(f"v_add_u32 v{vTc+x}, 8192, v{vTc+x}")
a(f"v_add_u32 v{vWc}, 1024, v{vWc}")
a(f"s_sub_u32 s{sK}, s{sK}, 1\ns_cmp_lg_u32 s{sK}, 0\ns_cbranch_scc1 L_hw")
a(f"s_add_u32 s{sSet}, s{sSet}, 1\nv_mov_b32 v{vH}, s{sSet}\nds_write_b32 v{vFl}, v{vH} offset:{F_WR}")
a(f"s_add_u32 s{sM+2}, s{sM+2}, 512\ns_addc_u32 s{sM+3}, s{sM+3}, 0\ns_cmp_lt_u32 s{sSet}, 2\ns_cbranch_scc1 L_hset")
a(f"s_mov_b32 s{sIdx}, {J0}\ns_mov_b32 s{sH}, {2*J0}")
a("L_hp:")
a(f"s_sub_u32 s{sK1}, s{sH}, {A.LAH}")
prog_wait_ge(f"s{sK1}",vH,1)
a(f"s_mov_b64 exec, 1\nglobal_atomic_add v{vTk}, v{vZ}, v{vOne}, s[74:75] sc0 {A.apol}\ns_mov_b64 exec, -1")
a(f"s_cmp_eq_u32 s{sIdx}, {J0}\ns_cbranch_scc1 L_hp2")
a(f"s_sub_u32 s{sK1}, s{sIdx}, 1\ns_and_b32 s{sT+1}, s{sK1}, 3\ns_lshl_b32 s{sT+2}, s{sT+1}, 13\ns_lshl_b32 s{sT+1}, s{sT+1}, 10\ns_add_u32 s{sT+1}, s{sT+1}, {L_WP}")
for x in range(4): a(f"v_add_u32 v{vTc+x}, s{sT+2}, v{vTr+x}")
a(f"v_add_u32 v{vWc}, s{sT+1}, v{vWw}\ns_waitcnt vmcnt(1)")
wcompute()
a(f"v_mov_b32 v{vH}, s{sK1}\nds_write_b32 v{vFl}, v{vH} offset:{F_WR}")
a("L_hp2:")
a(f"s_waitcnt vmcnt(0)\nv_readfirstlane_b32 s{sK1}, v{vTk}")
a(f"s_sub_u32 s{sT+1}, s{sK1}, {NFULL}\ns_and_b32 s{sT+3}, s{sT+1}, 1\ns_lshl_b32 s{sT+3}, s{sT+3}, 8\ns_lshr_b32 s{sT+1}, s{sT+1}, 1\ns_add_u32 s{sT+1}, s{sT+1}, {NFULL}")
a(f"s_cmp_lt_u32 s{sK1}, {NFULL}\ns_cselect_b32 s{sT+1}, s{sK1}, s{sT+1}\ns_cselect_b32 s{sT+3}, 512, s{sT+3}\ns_cselect_b32 s{sT+4}, 2, 1\ns_add_u32 s{sH}, s{sH}, s{sT+4}")
a(f"s_lshr_b32 s{sK}, s{sT+1}, 4\ns_add_u32 s{sK}, s{sK}, {S}\ns_mul_i32 s{sT+2}, s{sGrp}, {A.prot}\ns_add_u32 s{sT+2}, s{sT+2}, s{sT+1}\ns_and_b32 s{sT+2}, s{sT+2}, 15")
chunk_id(sOff,sK,sT+2)
a(f"s_cmp_ge_u32 s{sK1}, {NPOOL}\ns_cselect_b32 s{sOff}, {END}, s{sOff}")
a(f"s_lshl_b32 s{sT+1}, s{sIdx}, 16\ns_or_b32 s{sT+1}, s{sT+1}, s{sOff}\ns_or_b32 s{sT+1}, s{sT+1}, s{sT+3}\ns_and_b32 s{sT+2}, s{sIdx}, 3\ns_lshl_b32 s{sT+3}, s{sT+2}, 2")
a(f"v_add_u32 v{vH+1}, s{sT+3}, v{vFl}\nv_mov_b32 v{vH}, s{sT+1}\nds_write_b32 v{vH+1}, v{vH} offset:{F_MB}")
a(f"s_cmp_eq_u32 s{sOff}, {END}\ns_cbranch_scc1 L_hfin")
a(f"s_lshl_b32 s{sLB}, s{sT+2}, 13")
dma(A.ppol,True)
a(f"s_add_u32 s{sIdx}, s{sIdx}, 1\ns_branch L_hp")
a("L_hfin:")
a(f"s_cmp_ge_u32 s{sMem}, 8\ns_cbranch_scc1 {'L_lite' if A.diag==5 else 'L_end'}")
a(f"s_lshl_b32 s{sT+2}, s{sHd}, 8\ns_add_u32 s14, s14, s{sT+2}\ns_addc_u32 s15, s15, 0")
prog_wait_ge(DONE,vH,2)
a("L_fpoll:")
for t in range(8): a(f"buffer_load_dwordx4 v[{vL+4*t}:{vL+4*t+3}], v{vLo}, s[28:31], {'0' if t<4 else 's78'} offen offset:{(t%4)*1024} sc1")
for t in range(8):
    a(f"s_waitcnt vmcnt({7-t})")
    for x in range(4):
        r=vL+4*t+x; o=vOP+4*t+x
        a(f"v_xor_b32 v{vH}, v{r}, v{o}" if t==0 and x==0 else f"v_bitop3_b32 v{vH}, v{vH}, v{r}, v{o} bitop3:0x60")
        a(f"v_and_b32 v{r}, -2, v{r}")
        if t: a(f"v_add_f32 v{vL+x}, v{vL+x}, v{r}")
if not A.nopre:
    a(f"v_and_b32 v{vH}, 1, v{vH}\nv_cmp_eq_u32 vcc, 0, v{vH}\ns_nop 4\ns_cbranch_vccz L_fgot\ns_sleep {A.fsleep}\n{CAP}\ns_branch L_fpoll\nL_fgot:")
for x in range(4): a(f"v_mov_b32 v{vL+4+x}, v{vL+x}")
a("s_nop 1")
for x in range(4): a(f"v_permlane32_swap_b32 v{vL+x}, v{vL+4+x}")
for x in range(4): a(f"v_add_f32 v{vL+x}, v{vL+x}, v{vL+4+x}")
a(f"v_cvt_pk_bf16_f32 v{vH}, v{vL}, v{vL+1}\nv_cvt_pk_bf16_f32 v{vH+1}, v{vL+2}, v{vL+3}\ns_mov_b32 exec_hi, 0\nglobal_store_dwordx2 v{vL8}, v[{vH}:{vH+1}], s[14:15] {A.outpol}")
if A.diag in (1,3):
    a(f"s_waitcnt vmcnt(0)\ns_memrealtime s[{sTS+2}:{sTS+3}]\ns_lshl_b32 s{sT}, s2, 3\ns_add_u32 s{sT}, s{sT}, 0x10000\ns_waitcnt lgkmcnt(0)\ns_mov_b64 exec, 1\nv_mov_b32 v7, s{sT}\nv_mov_b32 v10, s{sTS+2}\nv_mov_b32 v11, s{sTS+3}\nglobal_store_dwordx2 v7, v[10:11], s[18:19]")
if A.diag==5:
    a(f"L_lite:\ns_waitcnt vmcnt(0)\ns_memrealtime s[{sTS+2}:{sTS+3}]\ns_lshl_b32 s{sT}, s2, 4\ns_add_u32 s{sT}, s{sT}, 0x20000\ns_waitcnt lgkmcnt(0)\ns_mov_b64 exec, 1\nv_mov_b32 v7, s{sT}\nv_mov_b32 v8, s{sTS}\nv_mov_b32 v9, s{sTS+1}\nv_mov_b32 v10, s{sTS+2}\nv_mov_b32 v11, s{sTS+3}\nglobal_store_dwordx4 v7, v[8:11], s[18:19]")
if A.diag==4:
    a(f"s_add_u32 s{sTS}, s{sTS}, {A.pad}\nL_pad:\ns_memrealtime s[{sTS+2}:{sTS+3}]\ns_waitcnt lgkmcnt(0)\ns_sub_u32 s{sT}, s{sTS+2}, s{sTS}\ns_cmp_lt_i32 s{sT}, 0\ns_cbranch_scc1 L_pad")
a("L_end:\ns_endpgm")
print(emit(A.out,[(NAME,a.text(),NV,88,None)],[(NAME,256,320,LDS_BYTES)]))
```
